```python
import torch

def _softmax(x, axis=-1):
    return torch.softmax(x, dim=axis)

def _gelu(x):
    return torch.nn.functional.gelu(x, approximate='tanh')

def _silu(x):
    return torch.nn.functional.silu(x)

def _sigmoid(x):
    return torch.sigmoid(x)

def _layernorm(x, axis=-1, eps=1e-05):
    m = x.mean(dim=axis, keepdim=True)
    v = x.var(dim=axis, keepdim=True, unbiased=False)
    return (x - m) / torch.sqrt(v + eps)

def _scatter_add(tgt, idx, src, axis=0):
    return tgt.clone().index_add_(axis, idx, src)

def _segment_sum(src, seg, n):
    out = torch.zeros((n,) + src.shape[1:], dtype=src.dtype)
    return out.index_add_(0, seg, src)

def _pad(x, pw):
    flat = tuple((v for pair in reversed(pw) for v in pair))
    return torch.nn.functional.pad(x, flat)
kernel_name = 'concat_heads__spectral_gfnet__memory_aug_recurrent_mem_tr__prompt'

def setup_inputs():

    _w = lambda a: (lambda t: t.to(torch.bfloat16) if t.is_floating_point() else t)(torch.as_tensor(a))

    def _A_setup():
        B, S, D = (1, 2048, 448)
        Df = D // 2 + 1
        return {'x': _w((lambda *s: torch.randn(*s, dtype=torch.bfloat16) * 0.05)(B, S, D)), 'w_r': _w((lambda *s: torch.randn(*s, dtype=torch.bfloat16) * 3.2)(S, Df) * 0.02), 'w_i': _w((lambda *s: torch.randn(*s, dtype=torch.bfloat16) * 3.2)(S, Df) * 0.02)}
    _A_in = _A_setup()

    def _B_setup():
        B, S, Dm = (1, 2048, 448)
        H, Dh = (16, 256)
        M, seg = (8, 32)
        seg = min(seg, S)
        S = S // seg * seg
        return {'x': _w((lambda *s: torch.randn(*s, dtype=torch.bfloat16) * 0.05)(B, S, Dm)), 'mem0': _w((lambda *s: torch.randn(*s, dtype=torch.bfloat16) * 0.4)(B, M, Dm)), 'Wq': _w((lambda *s: torch.randn(*s, dtype=torch.bfloat16) * 6.4)(Dm, H, Dh) * Dm ** (-0.5)), 'Wk': _w((lambda *s: torch.randn(*s, dtype=torch.bfloat16) * 6.4)(Dm, H, Dh) * Dm ** (-0.5)), 'Wv': _w((lambda *s: torch.randn(*s, dtype=torch.bfloat16) * 0.4)(Dm, H, Dh) * Dm ** (-0.5)), 'Wo': _w((lambda *s: torch.randn(*s, dtype=torch.bfloat16) * 0.4)(H, Dh, Dm) * (H * Dh) ** (-0.5)), 'seg_len': seg}
    _B_in = _B_setup()
    return {'A_x': _A_in['x'], 'A_w_r': _A_in['w_r'], 'A_w_i': _A_in['w_i'], 'B_x': _B_in['x'], 'B_mem0': _B_in['mem0'], 'B_Wq': _B_in['Wq'], 'B_Wk': _B_in['Wk'], 'B_Wv': _B_in['Wv'], 'B_Wo': _B_in['Wo'], 'B_seg_len': _B_in['seg_len']}

def reference(A_x, A_w_r, A_w_i, B_x, B_mem0, B_Wq, B_Wk, B_Wv, B_Wo, B_seg_len):

    def _A_ref(x, w_r, w_i):
        B, S, D = x.shape
        X = (lambda x, axes=(-2, -1): torch.fft.rfft2(x.float(), dim=axes))(x, axes=(-2, -1))
        W = w_r + 1j * w_i
        X = X * W
        y = (lambda x, s, axes=(-2, -1): torch.fft.irfft2(x, s=s, dim=axes).to(torch.bfloat16))(X, (S, D), axes=(-2, -1))
        return y

    def _B_ref(x, mem0, Wq, Wk, Wv, Wo, seg_len):
        B, S, Dm = x.shape
        H, Dh = (Wq.shape[1], Wq.shape[2])
        M = mem0.shape[1]
        scale = Dh ** (-0.5)
        n_seg = S // seg_len
        L = M + seg_len
        idx = torch.arange(L)
        mask = (idx[:, None] < M) | (idx[:, None] >= idx[None, :])
        mem = mem0
        outs = []
        for s in range(n_seg):
            xs = x[:, s * seg_len:(s + 1) * seg_len, :].clone()
            h = torch.concatenate([mem, xs], axis=1)
            q = torch.einsum('btd,dhe->bhte', h, Wq)
            k = torch.einsum('btd,dhe->bhte', h, Wk)
            v = torch.einsum('btd,dhe->bhte', h, Wv)
            scores = torch.einsum('bhqe,bhke->bhqk', q, k) * scale
            scores = torch.where(mask[None, None], scores, -1000000000.0)
            p = _softmax(scores, axis=-1)
            o = torch.einsum('bhqk,bhke->bhqe', p, v)
            o = torch.einsum('bhte,hed->btd', o, Wo)
            mem = o[:, :M, :].clone()
            outs.append(o[:, M:, :])
        return torch.concatenate(outs, axis=1)
    a = _A_ref(A_x, A_w_r, A_w_i)
    b = _B_ref(B_x, B_mem0, B_Wq, B_Wk, B_Wv, B_Wo, B_seg_len)
    return torch.concatenate([a, b], axis=-1)
```

```python
WA=0; WB=0x620000; TF=0xC40000; TI=0xCB0000; MEMB=0xD20000; PB=0xD90000; FA=0xE30000; FB=0x1030000
UB=0x1230000; VX=0x1930000; QX=0x3530000; MEM2=0x5130000; FLG=0x51A0000; XP=0x51B0000; XA=0x5370000; WSEND=0x5530000
K_AX,K_WR,K_WI,K_BX,K_MEM0,K_WQ,K_WK,K_WV,K_WO,K_SEG,K_OUT,K_DBG,K_WS = [8*i for i in range(13)]

class G:
    def __init__(s): s.L=[]; s.n=0
    def __call__(s, t):
        for ln in t.strip("\n").split("\n"):
            ln=ln.strip()
            if ln: s.L.append(ln if ln.endswith(":") else " "+ln)
    def lab(s, p="L"):
        s.n+=1; return f"{p}_{s.n}"
    def text(s): return "\n".join(s.L)+"\n"

def v(a,n=1): return f"v{a}" if n==1 else f"v[{a}:{a+n-1}]"
def a(a_,n=1): return f"a{a_}" if n==1 else f"a[{a_}:{a_+n-1}]"
def s(a_,n=1): return f"s{a_}" if n==1 else f"s[{a_}:{a_+n-1}]"
def r(x,n=1):
    if x<256:
        assert x+n<=256; return v(x,n)
    return a(x-256,n)

def addbase(g, dst, src, off):
    g(f"s_add_u32 s{dst}, s{src}, {off}\ns_addc_u32 s{dst+1}, s{src+1}, 0")

def kernel(name, body, vgpr, acc):
    from hazard import fix
    body=fix(body)
    return f""".globl {name}
.p2align 8
.type {name},@function
{name}:
{body} s_endpgm
""", f""".p2align 6
.amdhsa_kernel {name}
  .amdhsa_next_free_vgpr {vgpr}
  .amdhsa_next_free_sgpr 102
  .amdhsa_accum_offset {acc}
  .amdhsa_group_segment_fixed_size 0
  .amdhsa_kernarg_size 104
  .amdhsa_user_sgpr_count 2
  .amdhsa_user_sgpr_kernarg_segment_ptr 1
  .amdhsa_system_sgpr_workgroup_id_x 1
.end_amdhsa_kernel
"""

def assemble(kerns):
    head="".join(f"; @launch kernel={k[0]} grid=({k[4]},1,1) block=({k[5]},1,1) lds={k[6]}\n" for k in kerns)
    t=[];d=[];seen=set()
    for k in kerns:
        if k[0] in seen: continue
        seen.add(k[0]); a_,b_=kernel(k[0],k[1],k[2],k[3]); t.append(a_); d.append(b_)
    return head+'.amdgcn_target "amdgcn-amd-amdhsa--gfx950"\n.text\n'+"".join(t)+'.section .rodata,"a"\n'+"".join(d)

F_ROLE=FLG; F_XCC=FLG+256; F_Q=FLG+0x400; F_VX=FLG+0x4400; F_F1=FLG+0x4C00; F_F2=FLG+0x4D00; F_QX=FLG+0x5000; F_STEP=FLG+0x8000
import struct
def f2u(x): return struct.unpack("<I",struct.pack("<f",x))[0]
def weave(g, M, side):
    for t in side.get(-1,[]): g(t)
    for i,m in enumerate(M):
        g(m)
        for t in side.get(i,[]): g(t)
```

```python
from gbase import *
from ggemm import lane_setup
MF="v_mfma_f32_32x32x16_bf16"
def trig(g, idxcode, mask, dC, dS, dN, acc=False):
    for e in range(8):
        idxcode(e)
        g(f"""v_and_b32 v16, {mask}, v16
        v_cvt_f32_u32 v16, v16
        v_mul_f32 v16, {f2u(1.0/(mask+1))}, v16
        v_cos_f32 v{20+(e&1)}, v16
        v_sin_f32 v{22+(e&1)}, v16""")
        if e&1:
            p=e>>1
            if acc:
                g(f"""v_cvt_pk_bf16_f32 v17, v20, v21
                v_cvt_pk_bf16_f32 v18, v22, v23
                v_xor_b32 v19, 0x80008000, v18
                v_accvgpr_write_b32 a{dC+p}, v17
                v_accvgpr_write_b32 a{dS+p}, v18
                v_accvgpr_write_b32 a{dN+p}, v19""")
            else:
                g(f"""v_cvt_pk_bf16_f32 v{dC+p}, v20, v21
                v_cvt_pk_bf16_f32 v{dS+p}, v22, v23
                v_xor_b32 v{dN+p}, 0x80008000, v{dS+p}""")

def srd(g, d, base, off, n):
    g(f"""s_add_u32 s{d}, s{base}, {off}
    s_addc_u32 s{d+1}, s{base+1}, 0
    s_mov_b32 s{d+2}, {n}
    s_mov_b32 s{d+3}, 0x00020000""")

def f1(g):
    lane_setup(g)
    g(f"""
    s_lshr_b32 s20, s18, 1
    s_and_b32 s21, s18, 1
    s_lshl_b32 s21, s21, 2
    s_add_u32 s21, s21, s16
    s_mul_i32 s22, s20, 896
    s_add_u32 s30, s10, s22
    s_addc_u32 s31, s11, 0
    v_mul_u32_u24 v5, {64*896}, v3
    v_lshl_add_u32 v5, v4, 4, v5
    s_mul_i32 s22, s21, {2*28672}
    s_add_u32 s22, s22, {TF}
    s_add_u32 s32, s4, s22
    s_addc_u32 s33, s5, 0
    v_lshlrev_b32 v6, 4, v2
    v_add_u32 v7, 28672, v6
    """)
    for sg in range(28):
        if sg and sg%4==0: g("v_add_u32 v6, 4096, v6\nv_add_u32 v7, 4096, v7")
        g(f"global_load_dwordx4 {a(4*sg,4)}, v5, s[30:31] offset:{32*sg}")
        g(f"global_load_dwordx4 {a(112+4*sg,4)}, v6, s[32:33] offset:{1024*(sg%4)}")
        g(f"global_load_dwordx4 {v(128+4*sg,4)}, v7, s[32:33] offset:{1024*(sg%4)}")
    g("v_lshlrev_b32 v8, 8, v4\nv_add_u32 v8, s20, v8")
    C,S,N=32,40,48
    for u in range(2):
        trig(g, lambda e: g(f"v_add_u32 v16, {64*(16*u+8*(e>>2)+(e&3))}, v8\nv_mul_u32_u24 v16, v16, v3"), 2047, C+4*u, S+4*u, N+4*u)
    XC,XS=64,80
    for sg in range(28):
        g(f"s_waitcnt vmcnt({min(63,3*(27-sg))})")
        g(f"{MF} {v(XC,16)}, {a(4*sg,4)}, {a(112+4*sg,4)}, {v(XC,16) if sg else 0}")
        g(f"{MF} {v(XS,16)}, {a(4*sg,4)}, {v(128+4*sg,4)}, {v(XS,16) if sg else 0}")
    FC,FS=96,104
    for p in range(8): g(f"v_cvt_pk_bf16_f32 v{FC+p}, v{XC+2*p}, v{XC+2*p+1}")
    for p in range(8): g(f"v_cvt_pk_bf16_f32 v{FS+p}, v{XS+2*p}, v{XS+2*p+1}")
    AR,AN=64,80
    for u in range(2):
        g(f"{MF} {v(AR,16)}, {v(FC+4*u,4)}, {v(C+4*u,4)}, {v(AR,16) if u else 0}")
        g(f"{MF} {v(AN,16)}, {v(FS+4*u,4)}, {v(C+4*u,4)}, {v(AN,16) if u else 0}")
        g(f"{MF} {v(AR,16)}, {v(FS+4*u,4)}, {v(N+4*u,4)}, {v(AR,16)}")
        g(f"{MF} {v(AN,16)}, {v(FC+4*u,4)}, {v(S+4*u,4)}, {v(AN,16)}")
    g(f"""s_lshl_b32 s22, s20, 10
    s_lshl_b32 s23, s21, 6
    s_add_u32 s22, s22, s23
    s_add_u32 s22, s22, {FA}
    s_add_u32 s30, s4, s22
    s_addc_u32 s31, s5, 0
    v_lshlrev_b32 v5, 16, v3
    v_lshl_add_u32 v5, v4, 4, v5""")
    for ri in range(2):
        for h in range(2):
            t=112+8*ri+4*h
            for p in range(4): g(f"v_cvt_pk_bf16_f32 v{t+p}, v{AR+16*ri+8*h+2*p}, v{AR+16*ri+8*h+2*p+1}")
            g(f"global_store_dwordx4 v5, {v(t,4)}, s[30:31] offset:{512*ri+32*h} sc1")

def f2(g, pre=None):
    lane_setup(g)
    C,S,N=0,32,64
    g("v_lshlrev_b32 v8, 2, v4")
    for mt in range(2):
        g(f"v_add_u32 v9, {32*mt}, v3")
        for k in range(4):
            o=16*mt+4*k
            trig(g, lambda e: g(f"v_add_u32 v16, {16*k+8*(e>>2)+(e&3)}, v8\nv_mul_u32_u24 v16, v16, v9"), 63, C+o, S+o, N+o, acc=True)
    if pre: pre(g)
    g(f"""s_lshl_b32 s20, s18, 16
    s_add_u32 s20, s20, {FA}
    s_add_u32 s30, s4, s20
    s_addc_u32 s31, s5, 0
    s_lshl_b32 s21, s16, 7
    v_lshlrev_b32 v5, 2, v3
    v_add_u32 v5, s21, v5
    v_lshl_add_u32 v6, v4, 12, v5
    s_mov_b32 s22, 0x05040100
    s_mov_b32 s23, 0x07060302""")
    RAW=32; FRG=96
    for k in range(4):
        for eh in range(2):
            if k or eh: g("v_add_u32 v6, 8192, v6")
            for ri in range(2):
                for e in range(4): g(f"global_load_dword v{RAW+16*k+8*ri+4*eh+e}, v6, s[30:31] offset:{1024*e+512*ri}")
    srd(g,36,12,0,921600); srd(g,40,14,0,921600); srd(g,44,4,FB,1<<21)
    g("s_waitcnt vmcnt(0)")
    for k in range(4):
        for ri in range(2):
            for j in range(4):
                b=RAW+16*k+8*ri+2*j
                for par in range(2): g(f"v_perm_b32 v{FRG+32*ri+16*par+4*k+j}, v{b+1}, v{b}, s{22+par}")
    W=32; Y=160; Z=224; H=96
    for par in range(2):
        g(f"""v_lshrrev_b32 v7, 1, v5
        v_add_u32 v7, {par}, v7
        v_cmp_lt_u32 vcc, 224, v7
        v_lshlrev_b32 v7, 1, v7
        v_mul_u32_u24 v9, 57600, v4
        s_mul_i32 s20, s18, 450
        v_add3_u32 v7, v7, v9, s20
        v_mov_b32 v9, 0x40000000
        v_cndmask_b32 v7, v7, v9, vcc""")
        for i in range(64): g(f"v_mov_b32 v{W+i}, 0")
        for mt in range(2):
            for i in range(16):
                g(f"s_mov_b32 s20, {(32*mt+8*(i>>2)+(i&3))*14400}")
                for c in range(2): g(f"buffer_load_short_d16_hi v{W+32*c+16*mt+i}, v7, s[{36+4*c}:{39+4*c}], s20 offen")
        fr=lambda ri,k: v(FRG+32*ri+16*par+4*k,4)
        for k in range(4):
            for mt in range(2):
                yr=v(Y+32*mt,16); yn=v(Y+32*mt+16,16); o=16*mt+4*k
                g(f"{MF} {yr}, {a(C+o,4)}, {fr(0,k)}, {yr if k else 0}")
                g(f"{MF} {yn}, {a(C+o,4)}, {fr(1,k)}, {yn if k else 0}")
            for mt in range(2):
                yr=v(Y+32*mt,16); yn=v(Y+32*mt+16,16); o=16*mt+4*k
                g(f"{MF} {yr}, {a(N+o,4)}, {fr(1,k)}, {yr}")
                g(f"{MF} {yn}, {a(S+o,4)}, {fr(0,k)}, {yn}")
        g("s_waitcnt vmcnt(0)")
        for mt in range(2):
            for i in range(16):
                yr=Y+32*mt+i; yn=yr+16; wr=W+16*mt+i; wi=wr+32; t=16+(i&1)
                g(f"""v_mul_f32 v{t}, v{yr}, v{wr}
                v_mul_f32 v{t+2}, v{yr}, v{wi}
                v_fma_f32 v{t}, v{yn}, v{wi}, v{t}
                v_fma_f32 v{t+2}, -v{yn}, v{wr}, v{t+2}""")
                if i&1: g(f"v_cvt_pk_bf16_f32 v{Z+8*mt+(i>>1)}, v16, v17\nv_cvt_pk_bf16_f32 v{Z+16+8*mt+(i>>1)}, v18, v19")
        zf=lambda ri,k: v(Z+16*ri+4*k,4)
        for k in range(4):
            for mt in range(2):
                hr=a(H+64*par+32*mt,16); hi=a(H+64*par+32*mt+16,16); o=16*mt+4*k
                g(f"{MF} {hr}, {a(C+o,4)}, {zf(0,k)}, {hr if k else 0}")
                g(f"{MF} {hi}, {a(C+o,4)}, {zf(1,k)}, {hi if k else 0}")
            for mt in range(2):
                hr=a(H+64*par+32*mt,16); hi=a(H+64*par+32*mt+16,16); o=16*mt+4*k
                g(f"{MF} {hr}, {a(N+o,4)}, {zf(1,k)}, {hr}")
                g(f"{MF} {hi}, {a(S+o,4)}, {zf(0,k)}, {hi}")
    g(f"""v_lshl_add_u32 v6, v4, 17, v5
    s_lshl_b32 s20, s18, 10
    v_add_u32 v6, s20, v6""")
    for mt in range(2):
        for i in range(16):
            g(f"s_mov_b32 s20, {(32*mt+8*(i>>2)+(i&3))*32768}")
            for ri in range(2):
                t=32+4*((2*i+ri)%16); x=H+32*mt+16*ri+i
                g(f"""v_accvgpr_read_b32 v{t}, a{x}
                v_accvgpr_read_b32 v{t+1}, a{x+64}
                v_cvt_pk_bf16_f32 v{t+2}, v{t}, v{t+1}
                buffer_store_dword v{t+2}, v6, s[44:47], s20 offen offset:{512*ri} sc1""")

def f3(g, pre=None):
    lane_setup(g)
    g(f"""s_lshr_b32 s20, s18, 1
    s_and_b32 s21, s18, 1
    s_mul_i32 s21, s21, 7
    s_lshl_b32 s22, s16, 1
    s_add_u32 s21, s21, s22
    s_lshl_b32 s22, s21, 15
    s_add_u32 s22, s22, {TI}
    s_add_u32 s32, s4, s22
    s_addc_u32 s33, s5, 0
    v_lshlrev_b32 v6, 4, v2
    v_mov_b32 v7, v6""")
    for k in range(32):
        if k and k%4==0: g("v_add_u32 v7, 4096, v7")
        g(f"global_load_dwordx4 {v(128+4*k,4)}, v7, s[32:33] offset:{1024*(k%4)}")
    L=g.lab("F3")
    g(f"s_cmp_eq_u32 s16, 3\ns_cbranch_scc1 {L}")
    for k in range(32):
        if k%4==0: g("v_add_u32 v7, 4096, v7")
        g(f"global_load_dwordx4 {a(128+4*k,4)}, v7, s[32:33] offset:{1024*(k%4)}")
    g(f"{L}:")
    C,S,N=24,32,40
    g("v_lshlrev_b32 v8, 6, v3\nv_add_u32 v8, s20, v8\nv_lshlrev_b32 v9, 3, v4")
    for k in range(2):
        trig(g, lambda e: g(f"v_add_u32 v16, {16*k+e}, v9\nv_mul_u32_u24 v16, v16, v8"), 2047, C+4*k, S+4*k, N+4*k)
    if pre: pre(g)
    g(f"""s_lshl_b32 s22, s20, 15
    s_add_u32 s22, s22, {FB}
    s_add_u32 s30, s4, s22
    s_addc_u32 s31, s5, 0
    s_lshl_b32 s22, s16, 7
    v_lshlrev_b32 v5, 2, v3
    v_add_u32 v5, s22, v5
    v_lshl_add_u32 v5, v4, 13, v5
    s_mov_b32 s22, 0x05040100
    s_mov_b32 s23, 0x07060302""")
    RAW=48; FRG=80
    for k in range(2):
        for eh in range(2):
            if k or eh: g(f"v_add_u32 v5, {4096 if eh else 12288}, v5")
            for ri in range(2):
                for e in range(4): g(f"global_load_dword v{RAW+16*k+8*ri+4*eh+e}, v5, s[30:31] offset:{1024*e+512*ri}")
    g("s_waitcnt vmcnt(0)")
    for k in range(2):
        for ri in range(2):
            for j in range(4):
                b=RAW+16*k+8*ri+2*j
                for par in range(2): g(f"v_perm_b32 v{FRG+16*ri+8*par+4*k+j}, v{b+1}, v{b}, s{22+par}")
    GA=0
    for k in range(2):
        for par in range(2):
            hr=v(FRG+8*par+4*k,4); hi=v(FRG+16+8*par+4*k,4); gr=a(GA+32*par,16); gi=a(GA+32*par+16,16)
            g(f"{MF} {gr}, {hr}, {v(C+4*k,4)}, {gr if k else 0}")
            g(f"{MF} {gi}, {hi}, {v(C+4*k,4)}, {gi if k else 0}")
        for par in range(2):
            hr=v(FRG+8*par+4*k,4); hi=v(FRG+16+8*par+4*k,4); gr=a(GA+32*par,16); gi=a(GA+32*par+16,16)
            g(f"{MF} {gr}, {hi}, {v(N+4*k,4)}, {gr}")
            g(f"{MF} {gi}, {hr}, {v(S+4*k,4)}, {gi}")
    g("s_lshl_b32 s22, s16, 13\nv_add_u32 v7, s22, v6")
    for c in range(8):
        t=48+12*(c&1)
        for i in range(8): g(f"v_accvgpr_read_b32 v{t+i}, a{GA+8*c+i}")
        for p in range(4): g(f"v_cvt_pk_bf16_f32 v{t+8+p}, v{t+2*p}, v{t+2*p+1}")
        g(f"ds_write_b128 v7, {v(t+8,4)} offset:{1024*c}")
    g("s_waitcnt lgkmcnt(0)\ns_barrier")
    for k in range(32): g(f"ds_read_b128 {a(4*k,4)}, v6 offset:{1024*k}")
    g(f"""s_mul_i32 s22, s20, 1792
    s_lshl_b32 s23, s21, 6
    s_add_u32 s22, s22, s23
    s_add_u32 s30, s6, s22
    s_addc_u32 s31, s7, 0
    v_mul_u32_u24 v5, {64*1792}, v3
    v_lshl_add_u32 v5, v4, 4, v5""")
    L=g.lab("F3")
    for t in range(2):
        D=32+16*t
        if t: g(f"s_cmp_eq_u32 s16, 3\ns_cbranch_scc1 {L}")
        for k in range(32):
            if t==0: g(f"s_waitcnt lgkmcnt({min(15,31-k)})")
            g(f"{MF} {v(D,16)}, {r(128+256*t+4*k,4)}, {a(4*k,4)}, {v(D,16) if k else 0}")
        for h in range(2):
            x=64+8*t+4*h
            for p in range(4): g(f"v_cvt_pk_bf16_f32 v{x+p}, v{D+8*h+2*p}, v{D+8*h+2*p+1}")
            g(f"global_store_dwordx4 v5, {v(x,4)}, s[30:31] offset:{64*t+32*h}")
    g(f"{L}:")
```

```python
from gbase import *
BUFSZ=28800
VXN=4
FR=32; ACC=64; CV=128
def lane_setup(g):
    g("v_and_b32 v2, 63, v0\nv_and_b32 v3, 31, v2\nv_lshrrev_b32 v4, 5, v2")

def gemm_item(g, mat, ST="sc1"):
    nt = VXN if mat=="VX" else 7
    lane_setup(g)
    g("s_and_b32 s20, s18, 7\ns_lshr_b32 s21, s18, 3")
    if mat=="VX":
        if VXN==4:
            g("""s_and_b32 s20, s18, 3
            s_lshr_b32 s21, s18, 5
            s_lshl_b32 s21, s21, 2
            s_add_u32 s20, s20, s21
            s_bfe_u32 s21, s18, 0x30002
            s_lshl_b32 s22, s17, 3
            s_add_u32 s21, s21, s22
            s_lshr_b32 s22, s21, 2
            s_and_b32 s23, s21, 3""")
        else:
            g("""s_lshl_b32 s22, s17, 2
            s_add_u32 s21, s21, s22
            s_lshr_b32 s22, s21, 1
            s_and_b32 s23, s21, 1""")
        g(f"""
        s_mul_i32 s24, s22, 458752
        s_mul_i32 s25, s23, {VXN*28672}
        s_add_u32 s24, s24, s25
        s_add_u32 s24, s24, {WB}
        s_lshr_b32 s25, s16, 1
        s_mul_i32 s25, s25, 14336
        s_add_u32 s24, s24, s25
        s_lshl_b32 s26, s22, 15
        s_mul_i32 s25, s23, {VXN*2048}
        s_add_u32 s26, s26, s25
        s_add_u32 s26, s26, {VX}
        """)
    else:
        g(f"""
        s_mul_i32 s21, s21, 7
        s_add_u32 s21, s21, s17
        s_lshr_b32 s22, s21, 1
        s_and_b32 s23, s21, 1
        s_mul_i32 s24, s22, 401408
        s_mul_i32 s25, s23, 200704
        s_add_u32 s24, s24, s25
        s_add_u32 s24, s24, {WA}
        s_lshr_b32 s25, s16, 1
        s_mul_i32 s27, s25, 100352
        s_add_u32 s27, s27, s24
        s_add_u32 s27, s27, 86016
        s_mul_i32 s25, s25, 14336
        s_add_u32 s24, s24, s25
        s_mul_i32 s26, s22, 28672
        s_mul_i32 s25, s23, 14336
        s_add_u32 s26, s26, s25
        s_add_u32 s26, s26, {QX}
        """)
    g(f"""
    s_lshl_b32 s51, s20, 8
    s_add_u32 s51, s51, {F_VX if mat=="VX" else F_QX}
    s_lshl_b32 s20, s20, 3
    s_lshl_b32 s25, s16, 1
    s_add_u32 s20, s20, s25
    s_mul_i32 s25, s20, 458752
    s_add_u32 s26, s26, s25
    s_add_u32 s30, s4, s26
    s_addc_u32 s31, s5, 0
    s_add_u32 s32, s30, 458752
    s_addc_u32 s33, s31, 0
    s_mul_i32 s25, s20, 28672
    s_add_u32 s25, s25, {XP}
    s_add_u32 s34, s4, s25
    s_addc_u32 s35, s5, 0
    s_and_b32 s25, s16, 1
    s_mul_i32 s25, s25, 7168
    v_lshlrev_b32 v5, 4, v2
    v_add_u32 v6, s25, v5
    v_add_u32 v7, 4096, v6
    s_lshr_b32 s28, s16, 1
    s_mul_i32 s28, s28, 14464
    s_add_u32 s28, s28, s25
    """)
    def src(i):
        if mat=="VX": return (24, i*28672)
        if i==6: return (27, 0)
        return (24, (i//3)*100352+(i%3)*28672)
    def dma(i):
        sr,o=src(i)
        g(f"""s_add_u32 s36, s{sr}, {o}
        s_add_u32 s36, s4, s36
        s_addc_u32 s37, s5, 0
        s_add_u32 m0, s28, {(i%3)*BUFSZ}
        s_nop 0""")
        for j in range(4): g(f"global_load_lds_dwordx4 v6, s[36:37] offset:{1024*j}")
        g(f"s_add_u32 m0, s28, {(i%3)*BUFSZ+4096}\ns_nop 0")
        for j in range(3): g(f"global_load_lds_dwordx4 v7, s[36:37] offset:{1024*j}")
    g("s_barrier")
    dma(0)
    g("v_mov_b32 v8, v5")
    for j in range(56):
        if j and j%4==0: g("v_add_u32 v8, 4096, v8")
        g(f"global_load_dwordx4 {a(4*j,4)}, v8, s[34:35] offset:{1024*(j%4)}")
        if j==40: dma(1)
    if mat=="VX":
        g(f"""v_lshrrev_b32 v9, 4, v3
        v_mul_u32_u24 v9, 14464, v9
        v_and_b32 v10, 15, v3
        v_lshlrev_b32 v10, 4, v10
        v_lshlrev_b32 v11, 8, v4
        v_add3_u32 v9, v9, v10, v11
        v_lshrrev_b32 v12, 4, v3
        v_lshlrev_b32 v12, 10, v12
        v_lshlrev_b32 v11, 9, v4
        v_add3_u32 v11, v11, v12, v10""")
    else:
        g(f"""v_and_b32 v12, 1, v3
        v_bfe_u32 v13, v3, 3, 1
        v_lshl_add_u32 v12, v13, 1, v12
        v_bfe_u32 v13, v3, 1, 1
        v_bfe_u32 v14, v3, 2, 1
        v_bfe_u32 v15, v3, 4, 1
        v_lshl_add_u32 v9, v13, 2, v12
        v_lshl_add_u32 v9, v15, 3, v9
        v_lshlrev_b32 v9, 4, v9
        v_mul_u32_u24 v16, 14464, v14
        v_lshlrev_b32 v17, 8, v4
        v_add3_u32 v9, v9, v16, v17
        v_lshl_add_u32 v10, v14, 2, v12
        v_lshl_add_u32 v10, v13, 3, v10
        v_lshlrev_b32 v10, 4, v10
        v_mul_u32_u24 v16, 14464, v15
        v_add3_u32 v10, v10, v16, v17
        v_mov_b32 v11, v5""")
    PF=6
    for i in range(nt):
        if i==0: g("s_waitcnt vmcnt(0)")
        elif i==1: g(f"s_waitcnt vmcnt({4+(7 if nt>2 else 0)})")
        else: g(f"s_waitcnt vmcnt({4+4+(7 if i+1<nt else 0)})")
        g("s_barrier")
        if i+2<nt: dma(i+2)
        g(f"v_add_u32 v12, {(i%3)*BUFSZ}, v{10 if (mat=='QX' and i==6) else 9}")
        for sg in range(PF): g(f"ds_read_b128 {v(FR+4*(sg%8),4)}, v12 offset:{512*sg}")
        for sg in range(28):
            g(f"s_waitcnt lgkmcnt({min(PF-1,27-sg)})")
            f=v(FR+4*(sg%8),4)
            for j in range(2):
                A=v(ACC+16*j,16); x=a(4*(28*j+sg),4); c=A if sg else "0"
                if mat=="VX": g(f"v_mfma_f32_32x32x16_bf16 {A}, {x}, {f}, {c}")
                else: g(f"v_mfma_f32_32x32x16_bf16 {A}, {f}, {x}, {c}")
            if sg+PF<28: g(f"ds_read_b128 {v(FR+4*((sg+PF)%8),4)}, v12 offset:{512*(sg+PF)}")
        g("s_nop 7")
        for j in range(2):
            if j==1: g("s_nop 3")
            for u in range(2):
                t=CV+8*j+4*u
                for p in range(4): g(f"v_cvt_pk_bf16_f32 v{t+p}, v{ACC+16*j+8*u+2*p}, v{ACC+16*j+8*u+2*p+1}")
                if mat=="VX": o=i*2048+u*256
                elif i<6: o=((i//3)*7+(i%3)*2+u)*1024
                else: o=(7*u+6)*1024
                g(f"v_add_u32 v13, {o}, v11")
                g(f"global_store_dwordx4 v13, {v(t,4)}, s[{30+2*j}:{31+2*j}] {ST}")

def dbg_wrap(name, fn, nq, nper):
    g=G()
    g(f"""s_cmp_ge_u32 s2, {nq*nper}
    s_cbranch_scc1 {name}_END
    s_load_dwordx2 s[4:5], s[0:1], {K_WS}
    s_load_dwordx2 s[6:7], s[0:1], {K_OUT}
    s_load_dwordx2 s[8:9], s[0:1], {K_BX}
    s_load_dwordx2 s[10:11], s[0:1], {K_AX}
    s_load_dwordx4 s[12:15], s[0:1], {K_WR}
    v_lshrrev_b32 v1, 6, v0
    s_nop 0
    v_readfirstlane_b32 s16, v1
    s_mul_i32 s18, s2, {(65536+nq-1)//nq}
    s_lshr_b32 s18, s18, 16
    s_mul_i32 s17, s18, {nq}
    s_sub_u32 s17, s2, s17
    s_waitcnt lgkmcnt(0)""")
    fn(g)
    g(f"{name}_END:")
    return (name+"_kernel", g.text(), 512, 256, nq*nper, 256, 160*1024)
```

```python
from gbase import *
NGEMM=224; NAUX=32
def magic448(g, n, q, t, sM, s448):
    g(f"v_lshrrev_b32 v{q}, 6, v{n}\nv_mul_u32_u24 v{q}, s{sM}, v{q}\nv_lshrrev_b32 v{q}, 16, v{q}\nv_mul_u32_u24 v{q}, s{s448}, v{q}\nv_sub_u32 v{n}, v{n}, v{q}")

def k1():
    g=G()
    g(f"""
    s_cmp_ge_u32 s2, {NGEMM+NAUX}
    s_cbranch_scc1 K1_END
    s_load_dwordx2 s[4:5], s[0:1], {K_WS}
    s_load_dwordx4 s[8:11], s[0:1], {K_WQ}
    s_load_dwordx4 s[12:15], s[0:1], {K_WV}
    s_load_dwordx2 s[6:7], s[0:1], {K_MEM0}
    v_lshrrev_b32 v1, 6, v0
    v_and_b32 v2, 63, v0
    v_readfirstlane_b32 s16, v1
    s_cmp_ge_u32 s2, {NGEMM}
    s_cbranch_scc1 K1_AUX
    s_and_b32 s17, s2, 7
    s_lshr_b32 s18, s2, 3
    s_and_b32 s19, s18, 1
    s_lshl_b32 s19, s19, 3
    s_add_u32 s17, s17, s19
    s_lshr_b32 s18, s18, 1
    v_and_b32 v3, 31, v2
    v_lshrrev_b32 v4, 5, v2
    s_mov_b32 s24, 0x05040100
    s_mov_b32 s25, 0x07060302
    s_waitcnt lgkmcnt(0)
    s_cmp_ge_u32 s18, 7
    s_cbranch_scc1 K1_MATB
    """)
    ACC=16; SL=80; DEPTH=6
    TMP=SL+16*DEPTH
    def common_a(g, w1):
        g(f"""
        s_lshl_b32 s20, s17, 9
        s_add_u32 s{w1}, s{w1}, s20
        s_addc_u32 s{w1+1}, s{w1+1}, 0
        s_lshl_b32 s21, s18, 6
        v_add_u32 v5, s21, v3
        v_lshlrev_b32 v5, 13, v5
        v_lshlrev_b32 v6, 4, v4
        v_add_u32 v5, v5, v6
        v_add_u32 v6, 0x40000, v5
        """)
        for i in range(64): g(f"v_mov_b32 v{ACC+i}, 0")
    def epi(g, vo):
        g("s_nop 15")
        for h2 in range(2):
            for ct in range(2):
                A=ACC+(h2*2+ct)*16
                for up in range(2):
                    b=A+8*up; t=SL+((h2*2+ct)*2+up)*4
                    g(f"""v_cvt_pk_bf16_f32 v{t}, v{b}, v{b+1}
                    v_cvt_pk_bf16_f32 v{t+1}, v{b+4}, v{b+5}
                    v_cvt_pk_bf16_f32 v{t+2}, v{b+2}, v{b+3}
                    v_cvt_pk_bf16_f32 v{t+3}, v{b+6}, v{b+7}
                    global_store_dwordx4 v{vo[ct]}, {v(t,4)}, s[4:5] offset:{h2*1024+up*512}""")
        g("s_endpgm")
    common_a(g, 8)
    g(f"""
    s_add_u32 s10, s10, s20
    s_addc_u32 s11, s11, 0
    s_lshl_b32 s21, s16, 6
    v_add_u32 v9, s21, v3
    v_lshlrev_b32 v7, 13, v9
    v_lshlrev_b32 v8, 4, v4
    v_add_u32 v7, v7, v8
    v_add_u32 v8, 0x40000, v7
    """)
    def loadA(sg):
        b=SL+16*(sg%DEPTH)
        g(f"""global_load_dwordx4 {v(b,4)}, v5, s[8:9] offset:{32*sg}
        global_load_dwordx4 {v(b+4,4)}, v6, s[8:9] offset:{32*sg}
        global_load_dwordx4 {v(b+8,4)}, v7, s[10:11] offset:{32*sg}
        global_load_dwordx4 {v(b+12,4)}, v8, s[10:11] offset:{32*sg}""")
    for sg in range(DEPTH): loadA(sg)
    g(f"""
    s_mul_i32 s20, s17, 401408
    s_lshl_b32 s21, s18, 11
    s_add_u32 s20, s20, s21
    s_add_u32 s4, s4, s20
    s_addc_u32 s5, s5, 0
    s_movk_i32 s22, 14336
    """)
    for ct in range(2):
        o=10+ct
        g(f"""
        v_add_u32 v12, {32*ct}, v9
        v_mov_b32 v13, 0
        v_cmp_le_u32 vcc, 112, v12
        v_addc_co_u32 v13, vcc, 0, v13, vcc
        v_cmp_le_u32 vcc, 224, v12
        v_addc_co_u32 v13, vcc, 0, v13, vcc
        v_cmp_le_u32 vcc, 336, v12
        v_addc_co_u32 v13, vcc, 0, v13, vcc
        v_mul_u32_u24 v14, 112, v13
        v_sub_u32 v12, v12, v14
        v_mul_u32_u24 v13, 7, v13
        v_lshrrev_b32 v14, 5, v12
        v_lshlrev_b32 v14, 1, v14
        v_bfe_u32 v15, v12, 2, 1
        v_add_u32 v14, v14, v15
        v_bfe_u32 v15, v12, 3, 2
        v_lshlrev_b32 v15, 2, v15
        v_and_b32 v1, 3, v12
        v_add_u32 v15, v15, v1
        v_subrev_u32 v1, 96, v12
        v_cmp_le_u32 vcc, 96, v12
        v_cndmask_b32 v14, v14, 6, vcc
        v_cndmask_b32 v15, v15, v1, vcc
        v_add_u32 v13, v13, v14
        v_mul_u32_u24 v13, s22, v13
        v_lshlrev_b32 v15, 4, v15
        v_lshlrev_b32 v14, 8, v4
        v_add3_u32 v{o}, v13, v14, v15
        """)
    for sg in range(16):
        b=SL+16*(sg%DEPTH)
        g(f"s_waitcnt vmcnt({4*(min(sg+DEPTH,16)-sg-1)})")
        for h2 in range(2):
            for ct in range(2):
                A=ACC+(h2*2+ct)*16
                g(f"v_mfma_f32_32x32x16_bf16 {v(A,16)}, {v(b+4*h2,4)}, {v(b+8+4*ct,4)}, {v(A,16)}")
        if sg+DEPTH<16: loadA(sg+DEPTH)
    epi(g,[10,11])
    g("K1_MATB:\ns_sub_u32 s18, s18, 7")
    common_a(g, 12)
    g(f"""
    s_mul_i32 s20, s17, 229376
    s_add_u32 s14, s14, s20
    s_addc_u32 s15, s15, 0
    s_lshl_b32 s21, s16, 6
    v_lshlrev_b32 v9, 1, v3
    v_add_u32 v9, s21, v9
    v_mul_u32_u24 v7, 7168, v4
    v_lshlrev_b32 v8, 1, v9
    v_add_u32 v7, v7, v8
    v_add_u32 v8, 3584, v7
    """)
    def loadB(sg):
        b=SL+16*(sg%DEPTH)
        g(f"""global_load_dwordx4 {v(b,4)}, v5, s[12:13] offset:{32*sg}
        global_load_dwordx4 {v(b+4,4)}, v6, s[12:13] offset:{32*sg}""")
        for i in range(8):
            g(f"global_load_dword v{b+8+i}, v{7+(i>>2)}, s[14:15] offset:{896*(i&3)}")
        g("s_add_u32 s14, s14, 14336\ns_addc_u32 s15, s15, 0")
    for sg in range(DEPTH): loadB(sg)
    g(f"""
    s_lshl_b32 s20, s17, 1
    s_mul_i32 s20, s20, 14336
    s_lshl_b32 s21, s18, 11
    s_add_u32 s20, s20, s21
    s_add_u32 s20, s20, {WB}
    s_add_u32 s4, s4, s20
    s_addc_u32 s5, s5, 0
    s_mov_b32 s22, 458752
    s_movk_i32 s23, 14336
    v_lshrrev_b32 v12, 5, v9
    v_mul_lo_u32 v12, v12, s22
    v_bfe_u32 v13, v9, 4, 1
    v_mul_u32_u24 v13, s23, v13
    v_and_b32 v14, 15, v9
    v_lshlrev_b32 v14, 4, v14
    v_add3_u32 v12, v12, v13, v14
    v_lshlrev_b32 v14, 8, v4
    v_add_u32 v10, v12, v14
    v_add_u32 v11, 16, v10
    """)
    for sg in range(16):
        b=SL+16*(sg%DEPTH); t=TMP+8*(sg&1)
        g(f"s_waitcnt vmcnt({10*(min(sg+DEPTH,16)-sg-1)})")
        for u in range(2):
            for p in range(4):
                g(f"v_perm_b32 v{t+4*u+p}, v{b+8+2*p+1}, v{b+8+2*p}, s{24+u}")
        g("s_nop 1")
        for h2 in range(2):
            for ct in range(2):
                A=ACC+(h2*2+ct)*16
                g(f"v_mfma_f32_32x32x16_bf16 {v(A,16)}, {v(b+4*h2,4)}, {v(t+4*ct,4)}, {v(A,16)}")
        if sg+DEPTH<16: loadB(sg+DEPTH)
    epi(g,[10,11])
    import struct
    f2u=lambda x: struct.unpack("<I",struct.pack("<f",x))[0]
    g(f"""
    K1_AUX:
    s_sub_u32 s17, s2, {NGEMM}
    s_mul_i32 s18, s17, 7
    s_add_u32 s18, s18, s16
    s_mul_i32 s19, s17, 448
    v_add_u32 v1, s19, v0
    v_and_b32 v3, 31, v2
    v_lshrrev_b32 v4, 5, v2
    v_and_b32 v5, 0x13, v3
    v_bfe_u32 v6, v3, 2, 1
    v_lshlrev_b32 v6, 3, v6
    v_bfe_u32 v7, v3, 3, 1
    v_lshlrev_b32 v7, 2, v7
    v_or3_b32 v5, v5, v6, v7
    s_movk_i32 s26, 9363
    s_movk_i32 s27, 448
    s_mov_b32 s28, {f2u(1.0/448)}
    s_waitcnt lgkmcnt(0)
    """)
    g(f"""
    s_add_u32 s30, s4, {MEMB+7168}
    s_addc_u32 s31, s5, 0
    v_mov_b32 v8, -1
    v_mov_b32 v9, -1
    v_mov_b32 v10, -1
    v_mov_b32 v11, -1
    v_lshlrev_b32 v12, 4, v1
    s_mov_b64 s[32:33], exec
    """)
    NCH=(FA-MEMB-7168)//16
    for i in range(5):
        g(f"""v_cmp_gt_u32 vcc, {NCH-14336*i if NCH-14336*i<14336 else 14336}, v1
        s_and_b64 exec, s[32:33], vcc
        global_store_dwordx4 v12, v[8:11], s[30:31]
        v_add_u32 v12, {14336*16}, v12""")
    g(f"""
    s_mov_b64 exec, s[32:33]
    s_add_u32 s30, s4, {MEM2+7168}
    s_addc_u32 s31, s5, 0
    v_lshlrev_b32 v12, 4, v1
    global_store_dwordx4 v12, v[8:11], s[30:31]
    v_add_u32 v12, {14336*16}, v12
    v_cmp_gt_u32 vcc, {28224-14336}, v1
    s_and_b64 exec, s[32:33], vcc
    global_store_dwordx4 v12, v[8:11], s[30:31]
    s_mov_b64 exec, s[32:33]
    s_add_u32 s30, s4, {FLG}
    s_addc_u32 s31, s5, 0
    v_mov_b32 v24, 0
    v_mov_b32 v25, 0
    v_mov_b32 v26, 0
    v_mov_b32 v27, 0
    v_lshlrev_b32 v12, 4, v1
    v_cmp_gt_u32 vcc, 4096, v1
    s_and_b64 exec, s[32:33], vcc
    global_store_dwordx4 v12, v[24:27], s[30:31]
    s_mov_b64 exec, s[32:33]
    s_cmp_lg_u32 s17, 0
    s_cbranch_scc1 K1_NOMEM
    v_and_b32 v13, 7, v0
    v_mul_u32_u24 v13, 896, v13
    v_lshrrev_b32 v14, 3, v0
    v_lshlrev_b32 v15, 4, v14
    v_add_u32 v15, v13, v15
    global_load_dwordx4 v[16:19], v15, s[6:7]
    s_add_u32 s30, s4, {MEMB}
    s_addc_u32 s31, s5, 0
    s_add_u32 s34, s4, {MEM2}
    s_addc_u32 s35, s5, 0
    s_waitcnt vmcnt(0)
    v_min_u32 v16, -2, v16
    v_min_u32 v17, -2, v17
    v_min_u32 v18, -2, v18
    v_min_u32 v19, -2, v19
    global_store_dwordx4 v12, v[16:19], s[30:31]
    global_store_dwordx4 v12, v[16:19], s[34:35]
    K1_NOMEM:
    v_lshlrev_b32 v12, 4, v2
    """)
    g(f"""
    s_load_dwordx2 s[36:37], s[0:1], {K_BX}
    v_mul_u32_u24 v13, 896, v3
    v_lshlrev_b32 v14, 3, v4
    v_add_u32 v13, v13, v14
    s_waitcnt lgkmcnt(0)
    """)
    for i in range(8):
        g(f"""
        s_add_u32 s20, s18, {224*i}
        s_mul_i32 s21, s20, 2341
        s_lshr_b32 s21, s21, 16
        s_mul_i32 s22, s21, 28
        s_sub_u32 s22, s20, s22
        s_mul_i32 s21, s21, 28672
        s_lshl_b32 s22, s22, 5
        s_add_u32 s21, s21, s22
        s_add_u32 s30, s36, s21
        s_addc_u32 s31, s37, 0
        global_load_dwordx2 {v(64+4*i,2)}, v13, s[30:31]
        global_load_dwordx2 {v(66+4*i,2)}, v13, s[30:31] offset:16
        """)
    N=2048*448
    for it in range(4):
        o=32+it*4
        g(f"s_add_u32 s20, s18, {224*(it&1)}")
        if it<2:
            g(f"""
            s_mul_i32 s21, s20, 2341
            s_lshr_b32 s21, s21, 16
            s_mul_i32 s22, s21, 28
            s_sub_u32 s22, s20, s22
            s_lshr_b32 s23, s21, 1
            s_lshl_b32 s23, s23, 5
            v_add_u32 v13, s23, v5
            s_lshl_b32 s22, s22, 4
            v_lshlrev_b32 v14, 3, v4
            v_add_u32 v14, s22, v14
            s_and_b32 s21, s21, 1
            s_cmp_eq_u32 s21, 0
            s_cselect_b32 s21, 0x3e800000, 0
            v_cmp_ge_u32 vcc, 224, v13
            v_cndmask_b32 v15, 0, 1.0, vcc
            """)
            for e in range(8):
                g(f"v_add_u32 v16, {e}, v14\nv_mul_u32_u24 v16, v13, v16")
                magic448(g,16,17,0,26,27)
                g(f"v_cvt_f32_u32 v16, v16\nv_mov_b32 v17, s21\nv_fma_f32 v16, v16, s28, v17\nv_sin_f32 v16, v16\ns_nop 0\nv_mul_f32 v{20+e}, v16, v15")
        else:
            g(f"""
            s_lshr_b32 s21, s20, 5
            s_lshl_b32 s21, s21, 5
            v_add_u32 v13, s21, v5
            s_and_b32 s22, s20, 31
            s_lshr_b32 s23, s22, 3
            s_lshl_b32 s23, s23, 6
            s_bfe_u32 s21, s22, 0x10002
            s_add_u32 s23, s23, s21
            s_and_b32 s21, s22, 1
            s_lshl_b32 s21, s21, 5
            s_add_u32 s23, s23, s21
            v_lshlrev_b32 v14, 3, v4
            v_add_u32 v14, s23, v14
            s_bitcmp1_b32 s22, 1
            s_cselect_b32 s21, 0x3f000000, 0x3e800000
            """)
            for e in range(8):
                g(f"""v_add_u32 v18, {16*(e>>2)+2*(e&3)}, v14
                v_mul_u32_u24 v16, v13, v18""")
                magic448(g,16,17,0,26,27)
                g(f"""v_cvt_f32_u32 v16, v16
                v_mov_b32 v17, s21
                v_fma_f32 v16, v16, s28, v17
                v_sin_f32 v16, v16
                v_mov_b32 v15, {f2u(2.0/N)}
                v_mov_b32 v17, {f2u(1.0/N)}
                v_cmp_eq_u32 vcc, 0, v18
                v_cndmask_b32 v15, v15, v17, vcc
                v_cmp_eq_u32 vcc, 224, v18
                v_cndmask_b32 v15, v15, v17, vcc
                v_cmp_gt_u32 vcc, 225, v18
                v_cndmask_b32 v15, 0, v15, vcc
                v_mul_f32 v{20+e}, v16, v15""")
        for p in range(4): g(f"v_cvt_pk_bf16_f32 v{o+p}, v{20+2*p}, v{21+2*p}")
        g(f"""s_lshl_b32 s20, s20, 10
        s_add_u32 s20, s20, {TF if it<2 else TI}
        s_add_u32 s30, s4, s20
        s_addc_u32 s31, s5, 0
        global_store_dwordx4 v12, {v(o,4)}, s[30:31]""")
    g("s_waitcnt vmcnt(4)")
    for i in range(8):
        g(f"""
        s_add_u32 s20, s18, {224*i}
        s_lshl_b32 s20, s20, 10
        s_add_u32 s20, s20, {XP}
        s_add_u32 s30, s4, s20
        s_addc_u32 s31, s5, 0
        v_swap_b32 v{65+4*i}, v{66+4*i}
        s_nop 0
        global_store_dwordx4 v12, {v(64+4*i,4)}, s[30:31]
        """)
    g("K1_END:")
    return ("k1_kernel", g.text(), 192, 192, NGEMM+NAUX, 448, 0)
```

```python
from gbase import *
from ggemm import *
from gteam import *
from gfft import *
from gpost import *
import os
TS=int(os.environ.get("TS","0"))
def claimq(g, p, nq, n, tag):
    nl,nh = n if isinstance(n,tuple) else (n,n)
    g(f"""
    s_waitcnt vmcnt(0)
    s_barrier
    s_cmp_lg_u32 s16, 0
    s_cbranch_scc1 {tag}_C1
    s_mov_b64 exec, 1
    v_mov_b32 v2, 1
    s_cmp_eq_u32 s51, 0
    s_cbranch_scc1 {tag}_T
    v_mov_b32 v1, s51
    global_atomic_add v1, v2, s[4:5] sc1
    {tag}_T:
    s_lshl_b32 s20, s17, 8
    s_add_u32 s20, s20, {F_Q+p*2048}
    v_mov_b32 v1, s20
    global_atomic_add v3, v1, v2, s[4:5] sc0 sc1
    s_cmp_lt_u32 s17, 4
    s_cselect_b32 s20, {nl}, {nh}
    s_waitcnt vmcnt(0)
    v_readfirstlane_b32 s18, v3
    s_cmp_lt_u32 s18, s20
    s_cbranch_scc1 {tag}_W
    s_mov_b32 s18, -1""")
    if nq>1:
        g(f"""
        s_mov_b64 exec, {(1<<nq)-1}
        v_lshlrev_b32 v1, 8, v0
        v_add_u32 v1, {F_Q+p*2048}, v1
        global_load_dword v3, v1, s[4:5] sc1
        v_mov_b32 v4, {nh}
        v_mov_b32 v5, {nl}
        v_cmp_gt_u32 vcc, 4, v0
        v_cndmask_b32 v4, v4, v5, vcc
        s_waitcnt vmcnt(0)
        v_cmp_lt_u32 vcc, v3, v4
        s_mov_b64 exec, 1
        s_cbranch_vccz {tag}_W
        s_ff1_i32_b32 s17, vcc_lo
        s_branch {tag}_T""")
    g(f"""
    {tag}_W:
    v_mov_b32 v1, 0x27F00
    v_mov_b32 v2, s18
    v_mov_b32 v3, s17
    ds_write_b64 v1, v[2:3]
    s_mov_b64 exec, -1
    s_waitcnt lgkmcnt(0)
    {tag}_C1:
    s_barrier
    v_mov_b32 v1, 0x27F00
    ds_read_b64 v[2:3], v1
    s_mov_b32 s51, 0
    s_waitcnt lgkmcnt(0)
    v_readfirstlane_b32 s18, v2
    v_readfirstlane_b32 s17, v3
    """)
def stamp(g, i):
    if TS:
        L=g.lab("TS")
        g(f"""s_cmp_lg_u32 s16, 0
        s_cbranch_scc1 {L}
        s_memrealtime s[20:21]
        s_lshl_b32 s22, s2, 6
        s_add_u32 s22, s22, {WSEND+0x10000+4*i}
        v_mov_b32 v1, s22
        s_waitcnt lgkmcnt(0)
        v_mov_b32 v2, s20
        global_store_dword v1, v2, s[4:5]
        {L}:""")
def k2(prof=False, spread=False):
    g=G()
    g(f"""s_cmp_ge_u32 s2, 256
    s_cbranch_scc1 K2_END
    s_load_dwordx2 s[4:5], s[0:1], {K_WS}
    s_load_dwordx2 s[6:7], s[0:1], {K_OUT}
    s_load_dwordx2 s[8:9], s[0:1], {K_BX}
    s_load_dwordx2 s[10:11], s[0:1], {K_AX}
    s_load_dwordx4 s[12:15], s[0:1], {K_WR}
    s_getreg_b32 s19, hwreg(HW_REG_XCC_ID)
    s_and_b32 s19, s19, 15
    v_lshrrev_b32 v1, 6, v0
    s_nop 0
    v_readfirstlane_b32 s16, v1
    s_mov_b32 s51, 0
    s_sub_u32 s50, s19, 1
    s_cmp_ge_u32 s50, 7
    s_cselect_b32 s50, 0, s50
    s_waitcnt lgkmcnt(0)""")
    stamp(g,0)
    if spread==1: g("s_branch K2_WORK")
    elif spread==2: g("s_cmp_ge_u32 s2, 40\ns_cbranch_scc1 K2_WORK")
    else: g("s_cmp_lg_u32 s19, 0\ns_cbranch_scc1 K2_WORK")
    claim(g, F_ROLE, 17, "R0")
    g("s_cmp_lt_u32 s17, 30\ns_cbranch_scc1 K2_TEAM\nK2_WORK:")
    def phase(p, nq, n, fn, tag, sig=None):
        g(f"s_mov_b32 s17, {'s50' if nq>1 else 0}\n{tag}_L:")
        claimq(g,p,nq,n,tag)
        g(f"s_cmp_eq_u32 s18, -1\ns_cbranch_scc1 {tag}_X")
        if sig: g(f"s_mov_b32 s51, {sig}")
        fn(g)
        g(f"s_branch {tag}_L\n{tag}_X:")
        stamp(g,p+1)
    def w(off,n,tag):
        def f(g):
            g(f"s_mov_b32 s24, {off}"); wait_flag(g,24,n,tag,"K2_EXIT")
        return f
    phase(0,7,256//VXN, lambda g: gemm_item(g,"VX"), "PVX")
    phase(1,1,128, f1, "PF1", F_F1)
    phase(2,7,(40,32), lambda g: gemm_item(g,"QX"), "PQX")
    phase(3,1,32, lambda g: f2(g,w(F_F1,128,"W1")), "PF2", F_F2)
    phase(4,1,128, lambda g: f3(g,w(F_F2,32,"W2")), "PF3")
    claim(g, F_ROLE, 17, "R1")
    g("s_cmp_lt_u32 s17, 30\ns_cbranch_scc1 K2_TEAM")
    phase(5,1,512, lambda g: post(g,flags=True), "PPO")
    g("K2_EXIT:\ns_waitcnt vmcnt(0)\ns_endpgm\nK2_TEAM:")
    team_entry(g,prof,flags=True)
    g("K2_END:")
    return ("k2_kernel", g.text(), 512, 256, 256, 256, 160*1024)
```

```python
from gbase import *
import math
SPIN=2000000
from ggemm import VXN
NVX=224//VXN
M16="v_mfma_f32_16x16x32_bf16"
def wait_flag(g, off_sgpr, cond, tag, exit_lab, n=1, sleep=8):
    L=g.lab(tag)
    g(f"""v_mov_b32 v10, s{off_sgpr}
    s_mov_b32 s41, 0
    {L}:""")
    if n==1: g(f"global_load_dword v12, v10, s[4:5] sc1")
    else: g(f"global_load_dwordx4 v[12:15], v10, s[4:5] sc1")
    g(f"""s_add_u32 s41, s41, 1
    s_cmp_gt_u32 s41, {SPIN}
    s_cbranch_scc1 {exit_lab}
    s_waitcnt vmcnt(0)""")
    if n==4: g("v_min3_u32 v12, v12, v13, v14\nv_min_u32 v12, v12, v15")
    g(f"""v_readfirstlane_b32 s42, v12
    s_cmp_ge_u32 s42, {cond}
    s_cbranch_scc1 {L}_D
    s_sleep {sleep}
    s_branch {L}
    {L}_D:""")

def post(g, flags=False, exit_lab="K2_EXIT"):
    XF=16; VF=128; SA=224
    g(f"""
    v_and_b32 v2, 63, v0
    v_and_b32 v3, 15, v2
    v_lshrrev_b32 v4, 4, v2
    s_lshr_b32 s20, s18, 3
    s_bfe_u32 s21, s18, 0x10002
    s_and_b32 s22, s18, 3
    s_lshl_b32 s22, s22, 2
    s_add_u32 s22, s22, s16
    """)
    if flags:
        g(f"s_lshr_b32 s23, s20, 3\ns_lshl_b32 s23, s23, 8\ns_add_u32 s24, s23, {F_QX}")
        wait_flag(g,24,32,"PQ",exit_lab)
        g(f"s_add_u32 s24, s23, {F_VX}")
        wait_flag(g,24,NVX,"PV",exit_lab)
    g(f"""
    s_mul_i32 s23, s20, 458752
    s_mul_i32 s24, s16, {4*28672}
    s_add_u32 s24, s24, s23
    s_add_u32 s24, s24, {QX}
    s_add_u32 s30, s4, s24
    s_addc_u32 s31, s5, 0
    s_lshl_b32 s24, s22, 15
    s_add_u32 s24, s24, s23
    s_add_u32 s24, s24, {VX}
    s_add_u32 s32, s4, s24
    s_addc_u32 s33, s5, 0
    s_mul_i32 s24, s20, 28672
    s_add_u32 s24, s24, {XP}
    s_add_u32 s34, s4, s24
    s_addc_u32 s35, s5, 0
    v_lshlrev_b32 v5, 9, v4
    s_lshl_b32 s24, s21, 8
    v_lshl_add_u32 v6, v3, 4, v5
    v_add_u32 v6, s24, v6
    v_bfe_u32 v8, v3, 2, 1
    v_lshrrev_b32 v9, 3, v3
    v_and_b32 v10, 3, v3
    v_lshlrev_b32 v7, 8, v8
    v_lshl_add_u32 v7, v9, 6, v7
    v_lshl_add_u32 v7, v10, 4, v7
    v_add_u32 v7, v7, v5
    v_lshlrev_b32 v11, 7, v8
    v_lshl_add_u32 v11, v10, 4, v11
    v_lshl_add_u32 v8, v9, 10, v11
    v_lshl_add_u32 v8, v4, 8, v8
    v_lshl_add_u32 v9, v9, 8, v11
    v_add_u32 v9, v9, v5
    """)
    for k in range(14):
        if k and k%2==0: g("v_add_u32 v7, 4096, v7")
        for jt in range(2): g(f"global_load_dwordx4 {v(XF+8*k+4*jt,4)}, v7, s[34:35] offset:{2048*(k%2)+128*jt}")
    for i in range(56):
        if i and i%2==0: g("v_add_u32 v6, 4096, v6")
        g(f"global_load_dwordx4 {a(4*i,4)}, v6, s[30:31] offset:{2048*(i%2)}")
    L1=g.lab("PO")
    g(f"s_waitcnt vmcnt(30)\ns_cmp_ge_u32 s22, 14\ns_cbranch_scc1 {L1}")
    for h in range(16):
        if h and h%2==0: g("v_add_u32 v8, 4096, v8")
        for ct in range(2): g(f"global_load_dwordx4 {v(VF+8*h+4*ct,4)}, v8, s[32:33] offset:{2048*(h%2)+64*ct}")
    g(f"s_waitcnt vmcnt(32)\ns_branch {L1}_B\n{L1}:\ns_waitcnt vmcnt(0)\n{L1}_B:")
    for k in range(14):
        for hh in range(4):
            for jt in range(2):
                A=a(SA+8*hh+4*jt,4)
                g(f"{M16} {A}, {v(XF+8*k+4*jt,4)}, {a(56*hh+4*k,4)}, {A if k else 0}")
    g(f"""s_lshl_b32 s24, s21, 4
    v_and_b32 v10, 1, v4
    v_lshlrev_b32 v10, 4, v10
    v_lshrrev_b32 v11, 1, v4
    v_lshl_add_u32 v10, v11, 2, v10
    v_sub_u32 v10, v3, v10
    v_add_u32 v10, s24, v10
    v_mov_b32 v11, 0xff800000""")
    for e in range(8): g(f"v_cmp_gt_i32 s[{60+2*e}:{61+2*e}], {8*(e>>2)+(e&3)}, v10")
    SX=64; MEM=16; R=44; T=96
    for i in range(32):
        g(f"v_accvgpr_read_b32 v{SX+i}, a{SA+i}\nv_cndmask_b32 v{SX+i}, v{SX+i}, v11, s[{60+2*(i&7)}:{61+2*(i&7)}]")
    for hh in range(4):
        x=SX+8*hh
        g(f"""v_max3_f32 v{T+hh}, v{x}, v{x+1}, v{x+2}
        v_max3_f32 v{T+hh}, v{T+hh}, v{x+3}, v{x+4}
        v_max3_f32 v{T+hh}, v{T+hh}, v{x+5}, v{x+6}
        v_max_f32 v{T+hh}, v{T+hh}, v{x+7}""")
    for p in range(2):
        g(f"v_permlane32_swap_b32 v{T+p}, v{T+p+2}\nv_max_f32 v{T+p}, v{T+p}, v{T+p+2}")
    for i in range(16): g(f"v_mov_b32 v{R+i}, 0")
    g(f"""v_mov_b32 v113, 0x4444
    v_mov_b32 v116, 0xeeee
    v_cmp_gt_u32 vcc, 8, v3
    v_cndmask_b32 v113, v116, v113, vcc
    s_mov_b32 s43, {f2u(math.log2(math.e)/16)}
    s_mul_i32 s24, s20, 7168
    s_add_u32 s24, s24, {MEM2}
    s_add_u32 s36, s4, s24
    s_addc_u32 s37, s5, 0
    v_lshlrev_b32 v5, 4, v2
    v_add_u32 v6, 4096, v5""")
    if flags:
        L=g.lab("PO")
        g(f"s_cmp_eq_u32 s20, 0\ns_cbranch_scc1 {L}\ns_lshl_b32 s24, s20, 8\ns_add_u32 s24, s24, {F_STEP-256}")
        wait_flag(g,24,1,"PS",exit_lab)
        g(f"{L}:")
    L=g.lab("PM")
    g(f"s_mov_b32 s41, 0\n{L}:")
    for kk in range(7): g(f"global_load_dwordx4 {v(MEM+4*kk,4)}, v{5+kk//4}, s[36:37] offset:{1024*(kk%4)} sc1")
    g(f"""s_add_u32 s41, s41, 1
    s_cmp_gt_u32 s41, {SPIN}
    s_cbranch_scc1 {exit_lab}
    s_waitcnt vmcnt(0)
    v_max_u32 v12, v{MEM}, v{MEM+1}""")
    for i in range(13): g(f"v_max3_u32 v12, v12, v{MEM+2+2*i}, v{MEM+3+2*i}")
    g(f"v_cmp_eq_u32 vcc, -1, v12\ns_cbranch_vccnz {L}")
    for kk in range(7):
        for hh in range(4): g(f"v_smfmac_f32_16x16x64_bf16 {v(R+4*hh,4)}, {v(MEM+4*kk,4)}, {a(56*hh+8*kk,8)}, v113")
    for p in range(2):
        A=R+4*p; B=R+4*(p+2); m=T+p; t=T+4
        for i in range(4): g(f"v_permlane32_swap_b32 v{A+i}, v{B+i}")
        g(f"""v_pk_add_f32 {v(A,2)}, {v(A,2)}, {v(B,2)}
        v_pk_add_f32 {v(A+2,2)}, {v(A+2,2)}, {v(B+2,2)}
        v_max3_f32 v{m}, v{m}, v{A}, v{A+1}
        v_max3_f32 v{m}, v{m}, v{A+2}, v{A+3}
        v_mov_b32 v{t}, v{m}
        v_permlane16_swap_b32 v{m}, v{t}
        v_max_f32 v{m}, v{m}, v{t}
        v_mul_f32 v{m}, s43, v{m}""")
        for i in range(4): g(f"v_fma_f32 v{A+i}, v{A+i}, s43, -v{m}\nv_exp_f32 v{A+i}, v{A+i}")
        g(f"v_mov_b32 v{t}, v{m}\nv_permlane32_swap_b32 v{m}, v{t}")
        for hh,mm in ((p,m),(p+2,t)):
            x=SX+8*hh
            for i in range(8): g(f"v_fma_f32 v{x+i}, v{x+i}, s43, -v{mm}\nv_exp_f32 v{x+i}, v{x+i}")
        for hh,mm in ((p,m),(p+2,t)):
            x=SX+8*hh
            g(f"v_add_f32 v{mm}, v{x}, v{x+1}")
            for i in range(2,8): g(f"v_add_f32 v{mm}, v{mm}, v{x+i}")
        g(f"""v_permlane32_swap_b32 v{m}, v{t}
        v_add_f32 v{m}, v{m}, v{t}
        v_add_f32 v{t}, v{A}, v{A+1}
        v_add_f32 v{m}, v{m}, v{A+2}
        v_add_f32 v{t}, v{t}, v{A+3}
        v_add_f32 v{m}, v{m}, v{t}
        v_mov_b32 v{t}, v{m}
        v_permlane16_swap_b32 v{m}, v{t}
        v_add_f32 v{m}, v{m}, v{t}
        v_rcp_f32 v{m}, v{m}""")
        for i in range(4): g(f"v_mul_f32 v{A+i}, v{A+i}, v{m}")
        g(f"""v_cvt_pk_bf16_f32 v{104+2*p}, v{A}, v{A+1}
        v_cvt_pk_bf16_f32 v{105+2*p}, v{A+2}, v{A+3}
        v_mov_b32 v{t}, v{m}
        v_permlane32_swap_b32 v{m}, v{t}""")
        if p==0: g("s_lshl_b32 s24, s16, 12\nv_add_u32 v6, s24, v5\ns_lshl_b32 s24, s16, 10\nv_add_u32 v7, s24, v5")
        for hh,mm in ((p,m),(p+2,t)):
            x=SX+8*hh
            for i in range(8): g(f"v_mul_f32 v{x+i}, v{x+i}, v{mm}")
            for i in range(4): g(f"v_cvt_pk_bf16_f32 v{x+i}, v{x+2*i}, v{x+2*i+1}")
            g(f"ds_write_b128 v6, {v(x,4)} offset:{1024*hh}")
    Le=g.lab("PE")
    g(f"""ds_write_b128 v7, v[104:107] offset:16384
    s_waitcnt lgkmcnt(0)
    s_barrier
    s_cmp_ge_u32 s22, 14
    s_cbranch_scc1 {Le}""")
    for i in range(20): g(f"ds_read_b128 {a(4*i,4)}, v5 offset:{1024*i}")
    O=96; UF=16
    for h in range(16):
        g(f"s_waitcnt lgkmcnt({min(15,19-h)})")
        for ct in range(2): g(f"{M16} {v(O+4*ct,4)}, {v(VF+8*h+4*ct,4)}, {a(4*h,4)}, {v(O+4*ct,4) if h else 0}")
    if flags:
        g(f"s_lshl_b32 s24, s20, 8\ns_lshl_b32 s25, s22, 4\ns_add_u32 s24, s24, s25\ns_add_u32 s24, s24, {F_STEP}")
        wait_flag(g,24,1,"PU",exit_lab,n=4,sleep=2)
    g(f"""s_mul_i32 s24, s20, 114688
    s_lshl_b32 s25, s22, 13
    s_add_u32 s24, s24, s25
    s_add_u32 s24, s24, {UB}
    s_add_u32 s36, s4, s24
    s_addc_u32 s37, s5, 0
    v_add_u32 v10, 4096, v9""")
    for q in range(4):
        for ct in range(2): g(f"global_load_dwordx4 {v(UF+8*q+4*ct,4)}, v{9+q//2}, s[36:37] offset:{2048*(q%2)+64*ct} sc1")
    g(f"""s_lshl_b32 s24, s20, 5
    s_lshl_b32 s25, s21, 4
    s_add_u32 s24, s24, s25
    s_mul_i32 s24, s24, 1792
    s_lshl_b32 s25, s22, 6
    s_add_u32 s24, s24, s25
    s_add_u32 s24, s24, 896
    s_add_u32 s30, s6, s24
    s_addc_u32 s31, s7, 0
    v_mul_u32_u24 v5, 1792, v3
    v_lshl_add_u32 v5, v4, 4, v5
    s_waitcnt lgkmcnt(0)""")
    for q in range(4):
        g(f"s_waitcnt vmcnt({6-2*q})")
        for ct in range(2): g(f"{M16} {v(O+4*ct,4)}, {v(UF+8*q+4*ct,4)}, {a(64+4*q,4)}, {v(O+4*ct,4)}")
    for p in range(4): g(f"v_cvt_pk_bf16_f32 v{104+p}, v{O+2*p}, v{O+2*p+1}")
    g(f"global_store_dwordx4 v5, v[104:107], s[30:31]\n{Le}:")
```

```python
from gbase import *
import math
import os
SPIN=2000000
from ggemm import VXN
NVX=224//VXN
TM=os.environ.get('TM','s_memtime')
SLA=eval(os.environ.get('SLA','None'))
SLB=eval(os.environ.get('SLB','None'))
def wreg_a(b): return r(256+8*b,8) if b<32 else r(120+8*(b-32),8)
def wreg_b(b): return r(256+8*b,8) if b<32 else r(128+8*(b-32),8)
def sub(reg8, half):
    import re
    m=re.match(r'([va])\[(\d+):',reg8); b=int(m.group(2))+4*half
    return f"{m.group(1)}[{b}:{b+3}]"

def team_sync(g, tag):
    g(f"""
    s_add_u32 s36, s4, {F_XCC}
    s_addc_u32 s37, s5, 0
    v_and_b32 v98, 63, v0
    v_min_u32 v98, 29, v98
    v_lshlrev_b32 v98, 2, v98
    s_mov_b32 s41, 0
    {tag}_TS:
    global_load_dword v99, v98, s[36:37] sc1
    s_add_u32 s41, s41, 1
    s_cmp_gt_u32 s41, {SPIN}
    s_cbranch_scc1 {tag}_EXIT
    s_waitcnt vmcnt(0)
    v_cmp_eq_u32 vcc, 0, v99
    s_cbranch_vccnz {tag}_TS
    s_add_u32 s41, s19, 1
    v_cmp_ne_u32 vcc, s41, v99
    s_mov_b32 s40, 1
    s_cbranch_vccz {tag}_TS2
    s_mov_b32 s40, 0
    {tag}_TS2:
    """)

def poll_mem(g, tag, P, vP0, vP1):
    g(f"""
    s_mov_b32 s41, 0
    {tag}_PM:
    global_load_dwordx4 {v(P,4)}, v{vP0}, s[30:31] sc1
    global_load_dwordx4 {v(P+4,4)}, v{vP1}, s[30:31] sc1
    s_add_u32 s41, s41, 1
    s_cmp_gt_u32 s41, {SPIN}
    s_cbranch_scc1 {tag}_EXIT
    s_waitcnt vmcnt(0)
    v_max3_u32 v116, v{P}, v{P+1}, v{P+2}
    v_max3_u32 v117, v{P+3}, v{P+4}, v{P+5}
    v_max3_u32 v116, v116, v{P+6}, v{P+7}
    v_max_u32 v116, v116, v117
    v_cmp_eq_u32 vcc, -1, v116
    s_cbranch_vccnz {tag}_PM
    ds_write_b128 v{vP0}, {v(P,4)}
    ds_write_b128 v{vP1}, {v(P+4,4)}
    s_waitcnt lgkmcnt(0)
    s_barrier
    """)

def common_setup(g):
    g(f"""
    v_and_b32 v118, 63, v0
    v_lshrrev_b32 v119, 4, v118
    v_and_b32 v117, 15, v118
    s_mul_i32 s20, s16, 112
    v_add_u32 v0, s20, v118
    v_add_u32 v1, 64, v0
    v_min_u32 v1, 447, v1
    v_lshlrev_b32 v0, 4, v0
    v_lshlrev_b32 v1, 4, v1
    v_lshlrev_b32 v2, 4, v118
    v_mov_b32 v113, 0x4444
    v_mov_b32 v116, 0xeeee
    v_cmp_gt_u32 vcc, 8, v117
    v_cndmask_b32 v113, v116, v113, vcc
    s_add_u32 s30, s4, {MEMB}
    s_addc_u32 s31, s5, 0
    s_add_u32 s32, s4, {PB}
    s_addc_u32 s33, s5, 0
    """)

def alpha(g, prof=False):
    MEM=8; Tb=56; TTb=62; KEY=68; KEY6=80; S=86; PL=98
    acc={0:36,1:40,6:44,2:48,3:52,4:36,5:40}
    vP0,vP1,vL,vK,vK2,vX0,vX1,vX2=range(8); vXR,vXR2,vPW,vPR1,vPR2,vS1,vS2=range(106,113); IDX=113; I2=114
    g(f"""
    s_mul_i32 s20, s17, 401408
    s_mul_i32 s21, s16, 100352
    s_add_u32 s20, s20, s21
    s_add_u32 s36, s4, s20
    s_addc_u32 s37, s5, 0
    v_and_b32 v119, 63, v0
    v_lshlrev_b32 v119, 4, v119
    """)
    for b in range(49):
        if b and b%2==0: g("v_add_u32 v119, 4096, v119")
        for h2 in range(2): g(f"global_load_dwordx4 {sub(wreg_a(b),h2)}, v119, s[36:37] offset:{(b%2)*2048+h2*1024}")
    team_sync(g,"AL")
    common_setup(g)
    g(f"""
    s_mul_i32 s20, s16, 14
    v_add_u32 v3, s20, v119
    v_lshlrev_b32 v3, 7, v3
    v_and_b32 v116, 7, v118
    v_lshl_add_u32 v3, v116, 4, v3
    s_add_u32 s20, s20, 12
    v_lshrrev_b32 v4, 1, v119
    v_add_u32 v4, s20, v4
    v_lshlrev_b32 v4, 7, v4
    v_lshl_add_u32 v4, v116, 4, v4
    v_and_b32 v98, 1, v119
    v_lshl_add_u32 v4, v98, 3, v4
    v_bfe_u32 v99, v117, 2, 1
    v_lshlrev_b32 v99, 4, v99
    v_bfe_u32 v100, v117, 1, 1
    v_lshl_add_u32 v99, v100, 3, v99
    v_lshrrev_b32 v100, 3, v117
    v_lshl_add_u32 v99, v100, 2, v99
    v_and_b32 v100, 1, v117
    v_add_u32 v99, v99, v100
    v_mul_u32_u24 v99, 896, v99
    s_mul_i32 s20, s16, 224
    v_lshl_add_u32 v5, v119, 4, v99
    v_add_u32 v5, s20, v5
    v_add_u32 v6, 1792, v5
    v_lshrrev_b32 v100, 5, v118
    v_mul_u32_u24 v100, 1792, v100
    v_lshl_add_u32 v7, v98, 4, v99
    v_add3_u32 v7, v7, v100, s20
    v_add_u32 v7, 192, v7
    s_lshl_b32 s42, s16, 13
    s_add_u32 s42, s42, 0x8000
    v_add_u32 v{vXR}, s42, v2
    v_lshrrev_b32 v100, 1, v119
    v_lshl_add_u32 v100, v100, 4, v117
    v_lshlrev_b32 v100, 4, v100
    v_lshl_add_u32 v100, v98, 3, v100
    v_add_u32 v100, 6144, v100
    v_add_u32 v{vXR2}, s42, v100
    s_mul_i32 s20, s16, 3072
    s_add_u32 s20, s20, 0x2000
    v_add_u32 v{vPW}, s20, v2
    v_lshrrev_b32 v100, 3, v117
    v_lshlrev_b32 v101, 10, v100
    v_lshl_add_u32 v101, v119, 8, v101
    v_lshl_add_u32 v101, v116, 4, v101
    v_add_u32 v{vPR1}, 0x2000, v101
    v_lshlrev_b32 v101, 8, v100
    v_lshl_add_u32 v101, v116, 4, v101
    v_lshl_add_u32 v101, v119, 2, v101
    v_add_u32 v{vPR2}, 0x2800, v101
    v_lshrrev_b32 v102, 1, v119
    v_lshlrev_b32 v101, 6, v116
    v_lshl_add_u32 v101, v102, 5, v101
    v_lshl_add_u32 v101, v100, 4, v101
    v_lshl_add_u32 v101, v98, 3, v101
    s_lshl_b32 s20, s17, 9
    v_add_u32 v{vS1}, s20, v101
    v_lshlrev_b32 v101, 5, v116
    v_lshl_add_u32 v101, v102, 4, v101
    v_lshl_add_u32 v101, v100, 3, v101
    v_lshl_add_u32 v101, v98, 1, v101
    s_lshr_b32 s20, s17, 1
    s_lshl_b32 s20, s20, 8
    s_and_b32 s21, s17, 1
    s_lshl_b32 s21, s21, 2
    s_add_u32 s20, s20, s21
    s_add_u32 s20, s20, 8192
    v_add_u32 v{vS2}, s20, v101
    v_lshlrev_b32 v100, 2, v98
    v_sub_u32 v100, v117, v100
    v_mov_b32 v101, 0x3f80
    v_mov_b32 v102, 0x3f800000
    v_cmp_eq_u32 vcc, 0, v100
    v_cndmask_b32 v114, 0, v101, vcc
    v_cmp_eq_u32 vcc, 1, v100
    v_cndmask_b32 v114, v114, v102, vcc
    v_cmp_eq_u32 vcc, 2, v100
    v_cndmask_b32 v115, 0, v101, vcc
    v_cmp_eq_u32 vcc, 3, v100
    v_cndmask_b32 v115, v115, v102, vcc
    s_mov_b32 s34, s8
    s_mov_b32 s35, s9
    s_mov_b32 s43, {f2u(math.log2(math.e)/16)}
    s_mov_b32 s44, 0x7fff7fff
    s_mov_b32 s45, 0
    """)
    def xdma():
        L=[]
        for tp in range(3):
            for tau in range(2):
                L.append(f"s_add_u32 m0, s42, {(2*tp+tau)*1024-64*tp}\ns_nop 0\nglobal_load_lds_dwordx4 v{vX0+tau}, s[34:35] offset:{64*tp}")
        L.append(f"s_add_u32 m0, s42, 6144\ns_nop 0\nglobal_load_lds_dwordx4 v{vX2}, s[34:35]")
        L.append("s_add_u32 s34, s34, 28672\ns_addc_u32 s35, s35, 0\ns_xor_b32 s42, s42, 0x18000")
        return L
    for t in xdma(): g(t)
    for i in range(36,56): g(f"v_mov_b32 v{i}, 0")
    g("AL_LOOP:")
    if prof: g(f"{TM} s[50:51]")
    poll_mem(g,"AL",PL,vP0,vP1)
    if prof: g(f"{TM} s[52:53]")
    for kk in range(7): g(f"ds_read_b128 {v(MEM+4*kk,4)}, v{vL} offset:{1024*kk}")
    def keys(tp): return [f"ds_read_b128 {v(KEY,4)}, v{vXR} offset:{2048*tp}", f"ds_read_b128 {v(KEY+4,4)}, v{vXR} offset:{2048*tp+1024}", f"ds_read_b128 {v(KEY+8,4)}, v{vK} offset:{512*tp}"]
    keys6=[f"ds_read_b64 {v(KEY6,2)}, v{vXR2}", f"ds_read_b64 {v(KEY6+2,2)}, v{vXR2} offset:512", f"ds_read_b64 {v(KEY6+4,2)}, v{vK2}"]
    sm=lambda t,kk: f"v_smfmac_f32_16x16x64_bf16 {v(acc[t],4)}, {v(MEM+4*kk,4)}, {wreg_a(t*7+kk)}, v{IDX}"
    cv=lambda d,s_: [f"v_cvt_pk_bf16_f32 v{d}, v{s_}, v{s_+1}", f"v_cvt_pk_bf16_f32 v{d+1}, v{s_+2}, v{s_+3}"]
    mt=lambda t,tb: f"v_mfma_f32_16x16x16_bf16 {v(acc[t],4)}, {v(tb,2)}, {v(I2,2)}, 0"
    ms=lambda i,first: f"v_mfma_f32_16x16x32_bf16 {v(S+4*i,4)}, {v(KEY+4*i,4)}, {v(TTb,4)}, {'0' if first else v(S+4*i,4)}"
    ms6=lambda i: f"v_mfma_f32_16x16x16_bf16 {v(S+4*i,4)}, {v(KEY6+2*i,2)}, {v(TTb+4,2)}, {v(S+4*i,4)}"
    zero=lambda t: [f"v_mov_b32 v{acc[t]+i}, 0" for i in range(4)]
    M=[]; side={}
    for kk in range(7):
        side.setdefault(len(M)-1,[]).append(f"s_waitcnt lgkmcnt({6-kk})")
        M+= [sm(0,kk),sm(1,kk),sm(6,kk)]
    side.setdefault(19,[]).extend(keys(0)+keys6)
    weave(g,M,side)
    M=[];side={}
    for kk in range(7): M+=[sm(2,kk),sm(3,kk)]
    side[4]=["s_nop 0"]+cv(Tb,acc[0])+cv(Tb+2,acc[1])+cv(Tb+4,acc[6])
    side[5]=[mt(0,Tb),mt(1,Tb+2),mt(6,Tb+4)]
    side[11]=cv(TTb,acc[0])+cv(TTb+2,acc[1])+cv(TTb+4,acc[6])+zero(4)+zero(5)
    side[12]=["s_waitcnt lgkmcnt(0)",ms(0,1),ms(1,1),ms(2,1)]+keys(1)
    weave(g,M,side)
    M=[];side={}
    for kk in range(7): M+=[sm(4,kk),sm(5,kk)]
    side[1]=[ms6(0),ms6(1),ms6(2)]
    side[4]=cv(Tb,acc[2])+cv(Tb+2,acc[3])
    side[5]=[mt(2,Tb),mt(3,Tb+2)]
    side[12]=cv(TTb,acc[2])+cv(TTb+2,acc[3])
    side[13]=["s_waitcnt lgkmcnt(0)",ms(0,0),ms(1,0),ms(2,0)]+keys(2)
    weave(g,M,side)
    for t in cv(Tb,acc[4])+cv(Tb+2,acc[5])+[mt(4,Tb),mt(5,Tb+2)]+cv(TTb,acc[4])+cv(TTb+2,acc[5])+["s_waitcnt lgkmcnt(0)",ms(0,0),ms(1,0),ms(2,0)]: g(t)
    g(f"v_xor_b32 v{vXR}, 0x18000, v{vXR}\nv_xor_b32 v{vXR2}, 0x18000, v{vXR2}")
    for i in range(3): g(f"ds_write_b128 v{vPW}, {v(S+4*i,4)} offset:{1024*i}")
    g(f"""
    s_waitcnt lgkmcnt(0)
    s_barrier
    s_cmp_lg_u32 s16, 0
    s_cbranch_scc1 AL_SKIP""")
    if prof: g(f"{TM} s[54:55]")
    for w in range(4): g(f"ds_read_b128 {v(36+4*w,4)}, v{vPR1} offset:{3072*w}\nds_read_b32 v{52+w}, v{vPR2} offset:{3072*w}")
    g(f"""
    s_waitcnt lgkmcnt(4)
    v_pk_add_f32 v[36:37], v[36:37], v[40:41]
    v_pk_add_f32 v[38:39], v[38:39], v[42:43]
    s_waitcnt lgkmcnt(0)
    v_pk_add_f32 v[44:45], v[44:45], v[48:49]
    v_pk_add_f32 v[46:47], v[46:47], v[50:51]
    v_pk_add_f32 v[52:53], v[52:53], v[54:55]
    v_pk_add_f32 v[36:37], v[36:37], v[44:45]
    v_pk_add_f32 v[38:39], v[38:39], v[46:47]
    v_add_f32 v40, v52, v53
    v_max3_f32 v41, v36, v37, v38
    v_max3_f32 v41, v41, v39, v40
    v_max_f32_dpp v41, v41, v41 row_ror:8 row_mask:0xf bank_mask:0xf
    v_mov_b32 v42, v41
    v_permlane16_swap_b32 v41, v42
    v_max_f32 v41, v41, v42
    v_mov_b32 v42, v41
    v_permlane32_swap_b32 v41, v42
    v_max_f32 v41, v41, v42
    v_mul_f32 v41, s43, v41
    v_fma_f32 v36, v36, s43, -v41
    v_fma_f32 v37, v37, s43, -v41
    v_exp_f32 v36, v36
    v_fma_f32 v38, v38, s43, -v41
    v_exp_f32 v37, v37
    v_fma_f32 v39, v39, s43, -v41
    v_exp_f32 v38, v38
    v_fma_f32 v40, v40, s43, -v41
    v_exp_f32 v39, v39
    v_add_f32 v41, v36, v37
    v_exp_f32 v40, v40
    v_add_f32 v41, v41, v38
    v_add_f32 v41, v41, v39
    v_add_f32 v41, v41, v40
    v_add_f32_dpp v41, v41, v41 row_ror:8 row_mask:0xf bank_mask:0xf
    v_mov_b32 v42, v41
    v_permlane16_swap_b32 v41, v42
    v_add_f32 v41, v41, v42
    v_mov_b32 v42, v41
    v_permlane32_swap_b32 v41, v42
    v_add_f32 v41, v41, v42
    v_rcp_f32 v41, v41
    v_mul_f32 v36, v36, v41
    v_mul_f32 v37, v37, v41
    v_mul_f32 v38, v38, v41
    v_mul_f32 v39, v39, v41
    v_mul_f32 v40, v40, v41
    v_cvt_pk_bf16_f32 v42, v36, v37
    v_cvt_pk_bf16_f32 v43, v38, v39
    v_cvt_pk_bf16_f32 v44, v40, v40
    v_and_b32 v42, s44, v42
    v_and_b32 v43, s44, v43
    v_and_b32 v44, s44, v44
    s_cmp_eq_u32 s40, 0
    s_cbranch_scc1 AL_SLOW
    global_store_dwordx2 v{vS1}, v[42:43], s[32:33]
    global_store_short v{vS2}, v44, s[32:33]
    s_branch AL_SKIP
    AL_SLOW:
    global_store_dwordx2 v{vS1}, v[42:43], s[32:33] sc1
    global_store_short v{vS2}, v44, s[32:33] sc1
    AL_SKIP:
    """)
    if prof:
        g(f"""{TM} s[56:57]
        s_cmp_lg_u32 s16, 0
        s_cbranch_scc1 AL_NP
        s_waitcnt lgkmcnt(0)
        v_mov_b32 v36, s50
        v_mov_b32 v37, s52
        v_mov_b32 v38, s54
        v_mov_b32 v39, s56
        s_mul_i32 s20, s17, 1024
        s_lshl_b32 s21, s45, 4
        s_add_u32 s20, s20, s21
        s_add_u32 s20, s20, {WSEND}
        v_mov_b32 v40, s20
        global_store_dwordx4 v40, v[36:39], s[4:5]
        AL_NP:""")
    for t in xdma(): g(t)
    for i in range(36,56): g(f"v_mov_b32 v{i}, 0")
    if SLA: g(f"s_cmp_eq_u32 s16, 0\ns_cbranch_scc1 AL_S0\ns_sleep {SLA[1]}\nAL_S0:\ns_sleep {SLA[0]}")
    g(f"""
    s_add_u32 s30, s30, 7168
    s_addc_u32 s31, s31, 0
    s_add_u32 s32, s32, 10240
    s_addc_u32 s33, s33, 0
    s_add_u32 s45, s45, 1
    s_cmp_lt_u32 s45, 63
    s_cbranch_scc1 AL_LOOP
    AL_EXIT:
    s_waitcnt vmcnt(0)
    s_endpgm
    """)

def beta(g, prof=False, flags=False):
    MEM=8; WT=52; Ub=68; US=84; PO=92; D=104; PL=40; VO=8
    vP0,vP1,vL=0,1,2; vWL,vVR,vD0,vD1,vU=3,4,5,6,7; IDX=113
    vRW,vRR,vM1,vM2,vPx,vPm=120,121,122,123,124,125
    acc=lambda hh,ct: 36+8*(hh&1)+4*ct
    g(f"""
    s_sub_u32 s17, s17, 16
    s_mul_i32 s20, s17, 458752
    s_mul_i32 s21, s16, 114688
    s_add_u32 s20, s20, s21
    s_add_u32 s20, s20, {WB}
    s_add_u32 s36, s4, s20
    s_addc_u32 s37, s5, 0
    v_and_b32 v118, 63, v0
    v_lshlrev_b32 v118, 4, v118
    s_lshl_b32 s42, s16, 14
    s_add_u32 s42, s42, 0x18000
    """)
    for tl in range(8):
        g(f"v_add_u32 v119, {tl*14336}, v118")
        for kk in range(6):
            if kk and kk%2==0: g("v_add_u32 v119, 4096, v119")
            for h2 in range(2): g(f"global_load_dwordx4 {sub(wreg_b(tl*6+kk),h2)}, v119, s[36:37] offset:{(kk%2)*2048+h2*1024}")
        g(f"v_add_u32 v119, 4096, v119\ns_add_u32 m0, s42, {tl*2048}\ns_nop 0")
        for h2 in range(2): g(f"global_load_lds_dwordx4 v119, s[36:37] offset:{h2*1024}")
    team_sync(g,"BE")
    common_setup(g)
    g(f"""
    v_add_u32 v{vWL}, s42, v2
    s_lshl_b32 s42, s16, 13
    s_add_u32 s42, s42, 0x8000
    v_add_u32 v{vVR}, s42, v2
    s_lshl_b32 s20, s16, 13
    v_add_u32 v{vD0}, s20, v2
    v_add_u32 v{vD1}, 4096, v{vD0}
    s_lshl_b32 s20, s17, 15
    s_add_u32 s20, s20, {VX}
    s_add_u32 s34, s4, s20
    s_addc_u32 s35, s5, 0
    v_and_b32 v98, 1, v119
    v_lshrrev_b32 v99, 1, v119
    v_lshlrev_b32 v100, 5, v98
    v_lshl_add_u32 v100, v99, 4, v100
    v_add_u32 v100, v100, v117
    v_lshlrev_b32 v100, 4, v100
    s_lshl_b32 s20, s16, 11
    v_add_u32 v{vU}, s20, v100
    s_lshl_b32 s20, s17, 13
    s_add_u32 s20, s20, {UB}
    s_add_u32 s46, s4, s20
    s_addc_u32 s47, s5, 0
    s_lshl_b32 s20, s16, 10
    s_add_u32 s20, s20, 0x2000
    v_lshlrev_b32 v100, 2, v118
    v_add_u32 v{vRW}, s20, v100
    s_lshl_b32 s20, s16, 8
    s_add_u32 s20, s20, 0x2000
    v_and_b32 v100, 31, v118
    v_lshlrev_b32 v101, 3, v100
    v_add_u32 v{vRR}, s20, v101
    v_bfe_u32 v101, v118, 4, 1
    v_bfe_u32 v102, v118, 3, 1
    v_lshlrev_b32 v102, 2, v102
    v_add_u32 v102, s16, v102
    v_lshlrev_b32 v102, 4, v102
    v_lshl_add_u32 v102, v101, 8, v102
    s_lshl_b32 s20, s17, 9
    v_add_u32 v102, s20, v102
    v_bfe_u32 v103, v118, 2, 1
    v_lshl_add_u32 v104, v103, 7, v102
    v_and_b32 v105, 3, v118
    v_lshl_add_u32 v{vM1}, v105, 2, v104
    v_mov_b32 v{vM2}, v{vM1}
    v_add_u32 v{vM1}, 7168, v{vM1}
    s_add_u32 s48, s4, {MEM2}
    s_addc_u32 s49, s5, 0
    v_and_b32 v100, 7, v118
    v_bfe_u32 v101, v118, 3, 1
    v_lshlrev_b32 v102, 9, v99
    v_lshl_add_u32 v102, v100, 6, v102
    v_lshl_add_u32 v102, v98, 5, v102
    v_lshl_add_u32 v102, v101, 4, v102
    s_lshl_b32 s20, s16, 11
    v_add_u32 v{vPx}, s20, v102
    v_lshlrev_b32 v102, 8, v99
    v_lshl_add_u32 v102, v100, 5, v102
    v_lshl_add_u32 v102, v101, 4, v102
    s_lshl_b32 s20, s16, 9
    s_add_u32 s20, s20, 8192
    v_add_u32 v{vPm}, s20, v102
    s_mov_b32 s44, 0x80008000
    s_mov_b32 s45, 0
    """)
    def vdma():
        L=[]
        for hf in range(2):
            for i in range(4):
                p=f"s_add_u32 m0, s42, {4096*hf}\ns_nop 0\n" if i==0 else ""
                L.append(p+f"global_load_lds_dwordx4 v{vD0+hf}, s[34:35] offset:{1024*i} sc1")
        L.append("s_add_u32 s34, s34, 458752\ns_addc_u32 s35, s35, 0\ns_xor_b32 s42, s42, 0x18000")
        return L
    if flags:
        g(f"""v_min_u32 v112, 7, v118
        v_lshlrev_b32 v112, 8, v112
        v_add_u32 v112, {F_VX}, v112
        s_lshl_b32 s20, s17, 4
        s_lshl_b32 s21, s16, 2
        s_add_u32 s20, s20, s21
        s_add_u32 s20, s20, {F_STEP}
        v_mov_b32 v114, s20
        s_mov_b32 s41, 0
        BE_V0:
        global_load_dword v115, v112, s[4:5] sc1
        s_add_u32 s41, s41, 1
        s_cmp_gt_u32 s41, {SPIN}
        s_cbranch_scc1 BE_EXIT
        s_waitcnt vmcnt(0)
        v_cmp_gt_u32 vcc, {NVX}, v115
        s_mov_b32 s59, vcc_lo
        s_bitcmp1_b32 s59, 0
        s_cbranch_scc1 BE_V0
        """)
    for t in vdma(): g(t)
    for i in range(36,52): g(f"v_mov_b32 v{i}, 0")
    g("BE_LOOP:")
    if prof: g(f"{TM} s[50:51]")
    PLr=104
    poll_mem(g,"BE",PLr,vP0,vP1)
    if prof: g(f"{TM} s[52:53]")
    for kk in range(7): g(f"ds_read_b128 {v(MEM+4*kk,4)}, v{vL} offset:{1024*kk}")
    if flags: g(f"s_cmp_eq_u32 s59, 0\ns_cbranch_scc1 BE_V1\nglobal_load_dword v115, v112, s[4:5] sc1\nBE_V1:")
    def wl(hh): return [f"ds_read_b128 {v(WT+8*ct+4*h2,4)}, v{vWL} offset:{(hh*2+ct)*2048+h2*1024}" for ct in range(2) for h2 in range(2)]
    def sm(hh,ct,kk):
        w=wreg_b((hh*2+ct)*6+kk) if kk<6 else v(WT+8*ct,8)
        return f"v_smfmac_f32_16x16x64_bf16 {v(acc(hh,ct),4)}, {v(MEM+4*kk,4)}, {w}, v{IDX}"
    def post(hh):
        L=[]
        for ct in range(2):
            A=acc(hh,ct); d=Ub+8*ct+2*hh
            L+=[f"v_cvt_pk_bf16_f32 v{d}, v{A}, v{A+1}", f"v_cvt_pk_bf16_f32 v{d+1}, v{A+2}, v{A+3}"]
        A=acc(hh,0);B=acc(hh,1)
        L+=[f"v_permlane32_swap_b32 v{A+i}, v{B+i}" for i in range(4)]
        L+=[f"v_pk_add_f32 {v(A,2)}, {v(A,2)}, {v(B,2)}", f"v_pk_add_f32 {v(A+2,2)}, {v(A+2,2)}, {v(B+2,2)}"]
        d=US+4*(hh>>1)+2*(hh&1)
        L+=[f"v_cvt_pk_bf16_f32 v{d}, v{A}, v{A+1}", f"v_cvt_pk_bf16_f32 v{d+1}, v{A+2}, v{A+3}"]
        if hh&1: L.append(f"global_store_dwordx4 v{vU}, {v(US+4*(hh>>1),4)}, s[46:47] offset:{1024*(hh>>1)} sc1")
        L+=[f"v_mov_b32 v{A+i}, 0" for i in range(8)]
        return L
    vd=vdma()
    for hh in range(4):
        M=[];side={}
        for kk in range(7):
            if hh==0: side.setdefault(len(M)-1,[]).append(f"s_waitcnt lgkmcnt({6-kk+4 if kk<6 else 0})")
            elif kk==6: side.setdefault(len(M)-1,[]).append("s_waitcnt lgkmcnt(0)")
            M+=[sm(hh,0,kk),sm(hh,1,kk)]
        side.setdefault(-1,[])[:0]=wl(hh)
        if hh==0:
            g("s_cmp_ge_u32 s45, 62\ns_cselect_b32 s58, 0, 458752")
            vd[-1]=vd[-1].replace("458752","s58")
            for i,t in enumerate(vd): side.setdefault(2+i,[]).append(t)
            side.setdefault(12,[]).append(f"s_cmp_eq_u32 s45, 0\ns_cbranch_scc1 BE_NM2\ns_mov_b32 exec_hi, 0\nglobal_store_dword v{vM2}, v126, s[48:49] sc1\ns_mov_b32 exec_hi, -1\nBE_NM2:")
        else:
            P=post(hh-1)
            for i,t in enumerate(P): side.setdefault(4+i//3,[]).append(t)
        weave(g,M,side)
    for t in post(3): g(t)
    g(f"""
    s_add_u32 s46, s46, 114688
    s_addc_u32 s47, s47, 0
    """)
    g(f"""
    s_cmp_eq_u32 s45, 63
    s_cbranch_scc1 BE_LAST
    """)
    for p in range(2):
        for ct in range(2):
            for j in range(2): g(f"ds_read_b128 {v(VO+16*p+8*ct+4*j,4)}, v{vVR} offset:{((2*p+j)*2+ct)*1024}")
    g(f"v_xor_b32 v{vVR}, 0x18000, v{vVR}")
    for i in range(8): g(f"v_mov_b32 v{D+i}, 0")
    if prof: g(f"{TM} s[54:55]")
    if SLB: g(f"s_sleep {SLB}")
    g(f"""
    s_mov_b32 s41, 0
    BE_PP:
    global_load_dwordx4 {v(PO,4)}, v{vPx}, s[32:33] sc1
    global_load_dwordx4 {v(PO+4,4)}, v{vPx}, s[32:33] offset:1024 sc1
    global_load_dwordx4 {v(PO+8,4)}, v{vPm}, s[32:33] sc1
    s_add_u32 s41, s41, 1
    s_cmp_gt_u32 s41, {SPIN}
    s_cbranch_scc1 BE_EXIT
    s_waitcnt vmcnt(0) lgkmcnt(0)
    v_or3_b32 v116, v{PO}, v{PO+1}, v{PO+2}
    v_or3_b32 v117, v{PO+3}, v{PO+4}, v{PO+5}
    v_or3_b32 v116, v116, v{PO+6}, v{PO+7}
    v_or3_b32 v117, v117, v{PO+8}, v{PO+9}
    v_or3_b32 v116, v116, v{PO+10}, v{PO+11}
    v_or_b32 v116, v116, v117
    v_and_b32 v116, s44, v116
    v_cmp_ne_u32 vcc, 0, v116
    s_cbranch_vccnz BE_PP
    """)
    if prof: g(f"{TM} s[56:57]")
    if flags: g("global_store_dword v114, v113, s[4:5] sc1")
    for p in range(2):
        for ct in range(2): g(f"v_smfmac_f32_16x16x64_bf16 {v(D+4*ct,4)}, {v(PO+4*p,4)}, {v(VO+16*p+8*ct,8)}, v{IDX}")
    for ct in range(2): g(f"v_smfmac_f32_16x16x64_bf16 {v(D+4*ct,4)}, {v(PO+8,4)}, {v(Ub+8*ct,8)}, v{IDX}")
    for i in range(4): g(f"v_permlane32_swap_b32 v{D+i}, v{D+4+i}")
    g(f"""
    v_pk_add_f32 {v(D,2)}, {v(D,2)}, {v(D+4,2)}
    v_pk_add_f32 {v(D+2,2)}, {v(D+2,2)}, {v(D+6,2)}
    ds_write2st64_b32 v{vRW}, v{D}, v{D+1} offset0:0 offset1:1
    ds_write2st64_b32 v{vRW}, v{D+2}, v{D+3} offset0:2 offset1:3
    s_waitcnt lgkmcnt(0)
    s_barrier
    ds_read2st64_b64 v[8:11], v{vRR} offset0:0 offset1:2
    ds_read2st64_b64 v[12:15], v{vRR} offset0:4 offset1:6
    s_mov_b32 exec_hi, 0
    s_waitcnt lgkmcnt(1)
    v_pk_add_f32 v[8:9], v[8:9], v[10:11]
    s_waitcnt lgkmcnt(0)
    v_pk_add_f32 v[12:13], v[12:13], v[14:15]
    v_pk_add_f32 v[8:9], v[8:9], v[12:13]
    v_cvt_pk_bf16_f32 v8, v8, v9
    v_min_u32 v8, -2, v8
    s_cmp_eq_u32 s40, 0
    s_cbranch_scc1 BE_SLOW
    global_store_dword v{vM1}, v8, s[30:31]
    s_branch BE_PUB
    BE_SLOW:
    global_store_dword v{vM1}, v8, s[30:31] sc1
    BE_PUB:
    v_mov_b32 v126, v8
    s_mov_b32 exec_hi, -1
    v_mov_b32 v36, 0
    v_mov_b32 v37, 0
    v_mov_b32 v38, 0
    v_mov_b32 v39, 0
    """)
    if prof:
        g(f"""s_cmp_lg_u32 s16, 0
        s_cbranch_scc1 BE_NP
        s_waitcnt lgkmcnt(0)
        v_mov_b32 v8, s50
        v_mov_b32 v9, s52
        v_mov_b32 v10, s54
        v_mov_b32 v11, s56
        s_mul_i32 s20, s17, 1024
        s_lshl_b32 s21, s45, 4
        s_add_u32 s20, s20, s21
        s_add_u32 s20, s20, {WSEND+16384}
        v_mov_b32 v12, s20
        global_store_dwordx4 v12, v[8:11], s[4:5]
        BE_NP:""")
    if flags:
        g(f"""v_add_u32 v114, 256, v114
        s_cmp_eq_u32 s59, 0
        s_cbranch_scc1 BE_V3
        s_add_u32 s20, s45, 2
        s_lshr_b32 s20, s20, 3
        s_mov_b32 s41, 0
        BE_V2:
        v_cmp_gt_u32 vcc, {NVX}, v115
        s_mov_b32 s59, vcc_lo
        s_bitcmp0_b32 s59, s20
        s_cbranch_scc1 BE_V3
        global_load_dword v115, v112, s[4:5] sc1
        s_add_u32 s41, s41, 1
        s_cmp_gt_u32 s41, {SPIN}
        s_cbranch_scc1 BE_EXIT
        s_waitcnt vmcnt(0)
        s_branch BE_V2
        BE_V3:""")
    g(f"""
    s_add_u32 s30, s30, 7168
    s_addc_u32 s31, s31, 0
    s_add_u32 s32, s32, 10240
    s_addc_u32 s33, s33, 0
    s_add_u32 s48, s48, 7168
    s_addc_u32 s49, s49, 0
    s_add_u32 s45, s45, 1
    s_branch BE_LOOP
    BE_LAST:
    s_waitcnt vmcnt(0)
    {"global_store_dword v114, v113, s[4:5] sc1" if flags else ""}
    BE_EXIT:
    s_waitcnt vmcnt(0)
    s_endpgm
    """)

def claim(g, addr_off, dst, tag):
    g(f"""
    s_barrier
    s_cmp_lg_u32 s16, 0
    s_cbranch_scc1 {tag}_C1
    v_mov_b32 v1, {addr_off}
    v_mov_b32 v2, 1
    s_mov_b64 exec, 1
    global_atomic_add v3, v1, v2, s[4:5] sc0 sc1
    v_mov_b32 v1, 0x27F00
    s_waitcnt vmcnt(0)
    ds_write_b32 v1, v3
    s_mov_b64 exec, -1
    s_waitcnt lgkmcnt(0)
    {tag}_C1:
    s_barrier
    v_mov_b32 v1, 0x27F00
    ds_read_b32 v2, v1
    s_waitcnt lgkmcnt(0)
    v_readfirstlane_b32 s{dst}, v2
    """)

def team_entry(g, prof=False, **kw):
    g(f"""
    s_add_u32 s20, s19, 1
    v_mov_b32 v2, s20
    s_lshl_b32 s20, s17, 2
    s_add_u32 s20, s20, {F_XCC}
    v_mov_b32 v1, s20
    global_store_dword v1, v2, s[4:5] sc1
    s_cmp_ge_u32 s17, 16
    s_cbranch_scc1 BETA
    """)
    alpha(g,prof)
    g("BETA:")
    beta(g,prof,**kw)

def team_dbg(prof=True, xsel=0, spread=False):
    g=G()
    g(f"""s_cmp_ge_u32 s2, 256
    s_cbranch_scc1 team_END
    s_load_dwordx2 s[4:5], s[0:1], {K_WS}
    s_load_dwordx2 s[8:9], s[0:1], {K_BX}
    s_getreg_b32 s19, hwreg(HW_REG_XCC_ID)
    s_and_b32 s19, s19, 15
    v_lshrrev_b32 v1, 6, v0
    s_nop 0
    v_readfirstlane_b32 s16, v1
    s_waitcnt lgkmcnt(0)""")
    if not spread: g(f"s_cmp_lg_u32 s19, {xsel}\ns_cbranch_scc1 team_END")
    claim(g, F_ROLE, 17, "TD")
    g("s_cmp_ge_u32 s17, 30\ns_cbranch_scc1 team_END")
    team_entry(g,prof)
    g("team_END:")
    return ("team_kernel", g.text(), 512, 256, 256, 256, 160*1024)
```

```python
import re
RX=re.compile(r'\b([vas])(\d+)\b|\b([vas])\[(\d+):(\d+)\]|\b(vcc|exec|m0)\b')
TRANS=("v_exp_","v_log_","v_rcp_","v_rsq_","v_sqrt_","v_sin_","v_cos_")
def regs(t):
    o=set()
    for m in RX.finditer(t):
        if m.group(1): o.add((m.group(1),int(m.group(2))))
        elif m.group(3): o|={(m.group(3),i) for i in range(int(m.group(4)),int(m.group(5))+1)}
        else: o.add((m.group(6),0))
    return o
class I:
    def __init__(s, ln):
        s.ln=ln; t=ln.split(";")[0].strip(); s.label=t[:-1] if t.endswith(":") else None
        s.op=t.split()[0] if t and not s.label else ""
        rest=t[len(s.op):].strip() if s.op else ""
        ops=[x.strip() for x in re.split(r',(?![^\[]*\])', rest)] if rest else []
        op=s.op; s.w=set(); s.r=set(); s.kind="other"; s.passes=0; s.A=set(); s.C=set(); s.data=set(); s.states=1
        R=[regs(x) for x in ops]
        U=lambda l: set().union(*l) if l else set()
        if op.startswith("v_mfma") or op.startswith("v_smfmac"):
            s.kind="mfma"; s.passes=8 if "32x32" in op else 4
            s.w=R[0]
            if op.startswith("v_smfmac"): s.A=R[1]|R[2]|R[3]; s.C=R[0]
            else: s.A=R[1]|R[2]; s.C=R[3]
            s.r=s.A|s.C
        elif op.startswith("v_"):
            s.kind="valu"
            if op.startswith("v_swap") or "permlane" in op: s.w=U(R[:2]); s.r=U(R)
            elif "_co_" in op: s.w=R[0]|R[1]; s.r=U(R[2:])
            else:
                s.w=R[0]; s.r=U(R[1:])
                if op.startswith(("v_fmac","v_mac","v_pk_fmac")) or "dpp" in t or "row_" in t or "quad_perm" in t or "d16" in op or op.startswith("v_writelane"): s.r|=R[0]
                if op.startswith("v_cndmask") and len(ops)==3: s.r.add(("vcc",0))
            s.dpp=("row_" in t or "quad_perm" in t or "_dpp" in op)
        elif op.startswith(("global_","buffer_","flat_")):
            s.kind="vmem"
            if "lds" in t.split() or "_lds_" in op: s.r=U(R); s.ldsdma=True
            elif "store" in op:
                s.r=U(R); d=R[1] if op.startswith("global") else R[0]
                if "x3" in op or "x4" in op: s.data=d
            elif "atomic" in op:
                if " sc0" in t: s.w=R[0]; s.r=U(R[1:])
                else: s.r=U(R)
            elif op in("buffer_inv","buffer_wbl2"): pass
            else:
                s.w=R[0]; s.r=U(R[1:])
        elif op.startswith("ds_"):
            s.kind="ds"
            if "read" in op or "rtn" in op or "permute" in op or "swizzle" in op: s.w=R[0]; s.r=U(R[1:])
            else: s.r=U(R)
        elif op.startswith("s_"):
            s.kind="salu"
            if op=="s_nop": s.states=int(ops[0],0)+1
            elif op.startswith(("s_cmp","s_bitcmp","s_cbranch","s_branch","s_waitcnt","s_barrier","s_endpgm","s_sleep","s_setprio")): s.r=U(R)
            else:
                if R: s.w=R[0]; s.r=U(R[1:])
        if s.label is not None or not op: s.states=0
        s.target=ops[0] if op.startswith(("s_cbranch","s_branch")) else None
def isv(x): return {y for y in x if y[0] in "va" and len(y[0])==1}
def iss(x): return {y for y in x if y[0]=="s" or y[0]=="vcc"}
def need(p, c):
    n=0
    if p.kind=="valu":
        pv=isv(p.w); ps=iss(p.w)
        if c.kind=="mfma" and pv&c.r: n=max(n,2)
        if c.kind=="valu":
            if pv&c.r:
                if c.dpp or "permlane" in c.op: n=max(n,2)
                if c.op.startswith(("v_readfirstlane","v_readlane")): n=max(n,1)
                if p.op.startswith(TRANS): n=max(n,1)
            if ps&c.r: n=max(n,4 if c.op.startswith(("v_readlane","v_writelane")) else 2)
        if c.kind=="vmem" and ps&c.r: n=max(n,5)
    elif p.kind=="mfma":
        big=8 if p.passes==4 else 12
        if c.kind=="mfma":
            if p.w&c.A: n=max(n,big)
            if p.w&c.C and not (p.w==c.C and p.passes==c.passes): n=max(n,big-2)
            if p.w&c.w and not (p.w&c.C): n=max(n,0)
        elif c.kind in("valu","vmem","ds"):
            if p.w&(c.r|c.w): n=max(n,big)
            if c.kind=="valu" and p.C&c.w: n=max(n,3 if p.passes==4 else 7)
    elif p.kind=="vmem":
        if p.data&c.w: n=max(n,2 if c.kind=="valu" else 1)
    elif p.kind=="salu":
        if ("m0",0) in p.w and getattr(c,"ldsdma",False): n=max(n,1)
    return n
def fix(text, verbose=False):
    ins=[I(l) for l in text.rstrip("\n").split("\n")]
    total=0
    for rounds in range(3):
        labs={x.label:i for i,x in enumerate(ins) if x.label}
        src={}
        for i,x in enumerate(ins):
            if x.target: src.setdefault(x.target,[]).append(i)
        out=[]; changed=0
        add={}
        def back(i, dist, c, depth):
            best=0; j=i-1
            while j>=0 and dist<20:
                dist+=add.get(j+1,0) if j+1!=cidx else 0
                p=ins[j]
                if p.label:
                    if depth<2:
                        for b in src.get(p.label,[]): best=max(best,back(b+1,dist,c,depth+1) if True else 0)
                elif p.op in("s_branch","s_endpgm") and j!=i-1 or (p.op in("s_endpgm",)):
                    break
                elif p.op=="s_branch" and depth==0: break
                else:
                    best=max(best,need(p,c)-dist)
                    dist+=p.states
                j-=1
            return best
        for cidx,c in enumerate(ins):
            if c.kind in("valu","mfma","vmem","ds"):
                n=back(cidx,0,c,0)
                if n>0: add[cidx]=n
        if not add: break
        for i,x in enumerate(ins):
            if i in add:
                n=add[i]; total+=n
                while n>0:
                    k=min(n,16); out.append(I(f" s_nop {k-1}")); n-=k
            out.append(x)
        ins=out
    if verbose: print("hazard nops inserted:", total)
    return "\n".join(x.ln for x in ins)+"\n"
```

```python
import sys
from gbase import *
from gk1 import k1
from gk2 import k2
sp=int(sys.argv[2]) if len(sys.argv)>2 else 0
pr=len(sys.argv)>3
open(sys.argv[1],"w").write(assemble([k1(), k2(prof=pr,spread=sp)]))
```

```python
from gbase import *
BUFSZ=28800
VXN=4
FR=32; ACC=64; CV=128
def lane_setup(g):
    g("v_and_b32 v2, 63, v0\nv_and_b32 v3, 31, v2\nv_lshrrev_b32 v4, 5, v2")

def gemm_item(g, mat, ST="sc1", first=False):
    nt = (1 if first else VXN) if mat=="VX" else 7
    lane_setup(g)
    g("s_and_b32 s20, s18, 7\ns_lshr_b32 s21, s18, 3")
    if mat=="VX":
        if first:
            g("""s_mov_b32 s20, 0
            s_lshr_b32 s22, s18, 4
            s_and_b32 s23, s18, 15
            s_mov_b32 s52, 1""")
        else:
            g("""s_lshr_b32 s20, s18, 3
            s_add_u32 s20, s20, 1
            s_and_b32 s21, s18, 7
            s_lshl_b32 s22, s17, 3
            s_add_u32 s21, s21, s22
            s_lshr_b32 s22, s21, 2
            s_and_b32 s23, s21, 3
            s_mov_b32 s52, 4""")
        g(f"""
        s_mul_i32 s24, s22, 458752
        s_mul_i32 s25, s23, {nt*28672}
        s_add_u32 s24, s24, s25
        s_add_u32 s24, s24, {WB}
        s_lshr_b32 s25, s16, 1
        s_mul_i32 s25, s25, 14336
        s_add_u32 s24, s24, s25
        s_lshl_b32 s26, s22, 15
        s_mul_i32 s25, s23, {nt*2048}
        s_add_u32 s26, s26, s25
        s_add_u32 s26, s26, {VX}
        """)
    else:
        g(f"""
        s_mul_i32 s21, s21, 7
        s_add_u32 s21, s21, s17
        s_lshr_b32 s22, s21, 1
        s_and_b32 s23, s21, 1
        s_mul_i32 s24, s22, 401408
        s_mul_i32 s25, s23, 200704
        s_add_u32 s24, s24, s25
        s_add_u32 s24, s24, {WA}
        s_lshr_b32 s25, s16, 1
        s_mul_i32 s27, s25, 100352
        s_add_u32 s27, s27, s24
        s_add_u32 s27, s27, 86016
        s_mul_i32 s25, s25, 14336
        s_add_u32 s24, s24, s25
        s_mul_i32 s26, s22, 28672
        s_mul_i32 s25, s23, 14336
        s_add_u32 s26, s26, s25
        s_add_u32 s26, s26, {QX}
        """)
    g(f"""
    s_lshl_b32 s51, s20, 8
    s_add_u32 s51, s51, {F_VX if mat=="VX" else F_QX}
    s_lshl_b32 s20, s20, 3
    s_lshl_b32 s25, s16, 1
    s_add_u32 s20, s20, s25
    s_mul_i32 s25, s20, 458752
    s_add_u32 s26, s26, s25
    s_add_u32 s30, s4, s26
    s_addc_u32 s31, s5, 0
    s_add_u32 s32, s30, 458752
    s_addc_u32 s33, s31, 0
    s_mul_i32 s25, s20, 28672
    s_add_u32 s25, s25, {XP}
    s_add_u32 s34, s4, s25
    s_addc_u32 s35, s5, 0
    s_and_b32 s25, s16, 1
    s_mul_i32 s25, s25, 7168
    v_lshlrev_b32 v5, 4, v2
    v_add_u32 v6, s25, v5
    v_add_u32 v7, 4096, v6
    s_lshr_b32 s28, s16, 1
    s_mul_i32 s28, s28, 14464
    s_add_u32 s28, s28, s25
    """)
    def src(i):
        if mat=="VX": return (24, i*28672)
        if i==6: return (27, 0)
        return (24, (i//3)*100352+(i%3)*28672)
    def dma(i):
        sr,o=src(i)
        g(f"""s_add_u32 s36, s{sr}, {o}
        s_add_u32 s36, s4, s36
        s_addc_u32 s37, s5, 0
        s_add_u32 m0, s28, {(i%3)*BUFSZ}
        s_nop 0""")
        for j in range(4): g(f"global_load_lds_dwordx4 v6, s[36:37] offset:{1024*j}")
        g(f"s_add_u32 m0, s28, {(i%3)*BUFSZ+4096}\ns_nop 0")
        for j in range(3): g(f"global_load_lds_dwordx4 v7, s[36:37] offset:{1024*j}")
    g("s_barrier")
    dma(0)
    g("v_mov_b32 v8, v5")
    for j in range(56):
        if j and j%4==0: g("v_add_u32 v8, 4096, v8")
        g(f"global_load_dwordx4 {a(4*j,4)}, v8, s[34:35] offset:{1024*(j%4)}")
        if j==40 and nt>1: dma(1)
    if mat=="VX":
        g(f"""v_lshrrev_b32 v9, 4, v3
        v_mul_u32_u24 v9, 14464, v9
        v_and_b32 v10, 15, v3
        v_lshlrev_b32 v10, 4, v10
        v_lshlrev_b32 v11, 8, v4
        v_add3_u32 v9, v9, v10, v11
        v_lshrrev_b32 v12, 4, v3
        v_lshlrev_b32 v12, 10, v12
        v_lshlrev_b32 v11, 9, v4
        v_add3_u32 v11, v11, v12, v10""")
    else:
        g(f"""v_and_b32 v12, 1, v3
        v_bfe_u32 v13, v3, 3, 1
        v_lshl_add_u32 v12, v13, 1, v12
        v_bfe_u32 v13, v3, 1, 1
        v_bfe_u32 v14, v3, 2, 1
        v_bfe_u32 v15, v3, 4, 1
        v_lshl_add_u32 v9, v13, 2, v12
        v_lshl_add_u32 v9, v15, 3, v9
        v_lshlrev_b32 v9, 4, v9
        v_mul_u32_u24 v16, 14464, v14
        v_lshlrev_b32 v17, 8, v4
        v_add3_u32 v9, v9, v16, v17
        v_lshl_add_u32 v10, v14, 2, v12
        v_lshl_add_u32 v10, v13, 3, v10
        v_lshlrev_b32 v10, 4, v10
        v_mul_u32_u24 v16, 14464, v15
        v_add3_u32 v10, v10, v16, v17
        v_mov_b32 v11, v5""")
    PF=6
    for i in range(nt):
        if i==0: g("s_waitcnt vmcnt(0)")
        elif i==1: g(f"s_waitcnt vmcnt({4+(7 if nt>2 else 0)})")
        else: g(f"s_waitcnt vmcnt({4+4+(7 if i+1<nt else 0)})")
        g("s_barrier")
        if i+2<nt: dma(i+2)
        g(f"v_add_u32 v12, {(i%3)*BUFSZ}, v{10 if (mat=='QX' and i==6) else 9}")
        for sg in range(PF): g(f"ds_read_b128 {v(FR+4*(sg%8),4)}, v12 offset:{512*sg}")
        for sg in range(28):
            g(f"s_waitcnt lgkmcnt({min(PF-1,27-sg)})")
            f=v(FR+4*(sg%8),4)
            for j in range(2):
                A=v(ACC+16*j,16); x=a(4*(28*j+sg),4); c=A if sg else "0"
                if mat=="VX": g(f"v_mfma_f32_32x32x16_bf16 {A}, {x}, {f}, {c}")
                else: g(f"v_mfma_f32_32x32x16_bf16 {A}, {f}, {x}, {c}")
            if sg+PF<28: g(f"ds_read_b128 {v(FR+4*((sg+PF)%8),4)}, v12 offset:{512*(sg+PF)}")
        g("s_nop 7")
        for j in range(2):
            if j==1: g("s_nop 3")
            for u in range(2):
                t=CV+8*j+4*u
                for p in range(4): g(f"v_cvt_pk_bf16_f32 v{t+p}, v{ACC+16*j+8*u+2*p}, v{ACC+16*j+8*u+2*p+1}")
                if mat=="VX": o=i*2048+u*256
                elif i<6: o=((i//3)*7+(i%3)*2+u)*1024
                else: o=(7*u+6)*1024
                g(f"v_add_u32 v13, {o}, v11")
                g(f"global_store_dwordx4 v13, {v(t,4)}, s[{30+2*j}:{31+2*j}] {ST}")

def dbg_wrap(name, fn, nq, nper):
    g=G()
    g(f"""s_cmp_ge_u32 s2, {nq*nper}
    s_cbranch_scc1 {name}_END
    s_load_dwordx2 s[4:5], s[0:1], {K_WS}
    s_load_dwordx2 s[6:7], s[0:1], {K_OUT}
    s_load_dwordx2 s[8:9], s[0:1], {K_BX}
    s_load_dwordx2 s[10:11], s[0:1], {K_AX}
    s_load_dwordx4 s[12:15], s[0:1], {K_WR}
    v_lshrrev_b32 v1, 6, v0
    s_nop 0
    v_readfirstlane_b32 s16, v1
    s_mul_i32 s18, s2, {(65536+nq-1)//nq}
    s_lshr_b32 s18, s18, 16
    s_mul_i32 s17, s18, {nq}
    s_sub_u32 s17, s2, s17
    s_waitcnt lgkmcnt(0)""")
    fn(g)
    g(f"{name}_END:")
    return (name+"_kernel", g.text(), 512, 256, nq*nper, 256, 160*1024)
```

```python
from gbase import *
NGEMM=224; NAUX=32
def magic448(g, n, q, t, sM, s448):
    g(f"v_lshrrev_b32 v{q}, 6, v{n}\nv_mul_u32_u24 v{q}, s{sM}, v{q}\nv_lshrrev_b32 v{q}, 16, v{q}\nv_mul_u32_u24 v{q}, s{s448}, v{q}\nv_sub_u32 v{n}, v{n}, v{q}")

import os
TS=int(os.environ.get("TS","0"))
def st(g,i):
    if TS: g(f"""s_waitcnt vmcnt(0)
        s_memrealtime s[40:41]
        s_load_dwordx2 s[44:45], s[0:1], {K_WS}
        s_lshl_b32 s42, s2, 6
        s_add_u32 s42, s42, {WSEND+0x10000+4*i}
        v_mov_b32 v190, s42
        s_waitcnt lgkmcnt(0)
        v_mov_b32 v191, s40
        global_store_dword v190, v191, s[44:45]""")
def k1():
    g=G()
    g(f"""
    s_cmp_ge_u32 s2, {NGEMM+NAUX}
    s_cbranch_scc1 K1_END
    """)
    st(g,8)
    g(f"""
    s_load_dwordx2 s[4:5], s[0:1], {K_WS}
    s_load_dwordx4 s[8:11], s[0:1], {K_WQ}
    s_load_dwordx4 s[12:15], s[0:1], {K_WV}
    s_load_dwordx2 s[6:7], s[0:1], {K_MEM0}
    v_lshrrev_b32 v1, 6, v0
    v_and_b32 v2, 63, v0
    v_readfirstlane_b32 s16, v1
    s_cmp_ge_u32 s2, {NGEMM}
    s_cbranch_scc1 K1_AUX
    s_and_b32 s17, s2, 7
    s_lshr_b32 s18, s2, 3
    s_and_b32 s19, s18, 1
    s_lshl_b32 s19, s19, 3
    s_add_u32 s17, s17, s19
    s_lshr_b32 s18, s18, 1
    v_and_b32 v3, 31, v2
    v_lshrrev_b32 v4, 5, v2
    s_mov_b32 s24, 0x05040100
    s_mov_b32 s25, 0x07060302
    s_waitcnt lgkmcnt(0)
    s_cmp_ge_u32 s18, 7
    s_cbranch_scc1 K1_MATB
    """)
    ACC=16; SL=80; DEPTH=6
    TMP=SL+16*DEPTH
    def common_a(g, w1):
        g(f"""
        s_lshl_b32 s20, s17, 9
        s_lshl_b32 s21, s18, 19
        s_add_u32 s21, s21, s20
        s_add_u32 s{w1}, s{w1}, s21
        s_addc_u32 s{w1+1}, s{w1+1}, 0
        v_lshrrev_b32 v12, 3, v2
        v_lshlrev_b32 v12, 13, v12
        v_and_b32 v13, 7, v2
        v_lshrrev_b32 v14, 4, v2
        v_xor_b32 v13, v13, v14
        v_lshl_add_u32 v5, v13, 4, v12
        v_xor_b32 v6, 64, v5
        s_lshl_b32 s26, s16, 16
        s_and_b32 s27, s16, 1
        s_lshl_b32 s27, s27, 6
        v_xor_b32 v7, s27, v5
        v_add_u32 v7, s26, v7
        v_add_u32 v8, {7*65536}, v6
        s_lshl_b32 s28, s16, 10
        s_lshl_b32 s29, s16, 13
        s_add_u32 s29, s29, 8192
        """)
    def dmaA(w1, st):
        g(f"""s_add_u32 m0, s28, {65536*(st&1)}
        s_nop 0
        global_load_lds_dwordx4 v7, s[{w1}:{w1+1}]
        s_mov_b32 m0, {65536*(st&1)+7168}
        s_nop 0
        global_load_lds_dwordx4 v8, s[{w1}:{w1+1}]
        s_add_u32 s{w1}, s{w1}, 128
        s_addc_u32 s{w1+1}, s{w1+1}, 0""")
    def rdaddr():
        g("""v_bfe_u32 v12, v3, 1, 3
        v_xor_b32 v12, v12, v4
        v_lshlrev_b32 v12, 4, v12
        v_lshl_add_u32 v176, v3, 7, v12
        v_xor_b32 v177, 32, v176
        v_xor_b32 v178, 64, v176
        v_xor_b32 v179, 96, v176""")
        for i in range(64): g(f"v_mov_b32 v{ACC+i}, 0")
    def touchA(w1):
        g(f"""v_lshlrev_b32 v12, 13, v2
        global_load_dword v188, v12, s[{w1}:{w1+1}]
        global_load_dword v189, v12, s[{w1}:{w1+1}] offset:128""")
    def mainloop(dma, rd, mm):
        for st in range(4):
            g(f"s_waitcnt vmcnt({[14,14,10,0][st]})\ns_barrier")
            rd(0); rd(1)
            for sg in range(4):
                mm(sg)
                if sg+2<4: rd(sg+2)
            if st<3:
                for i in range(8): g(f"v_xor_b32 v{176+i}, 0x10000, v{176+i}")
            if st<2:
                g("s_barrier"); dma(st+2)
    def epi(g, vo):
        g("s_nop 15")
        for h2 in range(2):
            for ct in range(2):
                A=ACC+(h2*2+ct)*16
                for up in range(2):
                    b=A+8*up; t=SL+((h2*2+ct)*2+up)*4
                    g(f"""v_cvt_pk_bf16_f32 v{t}, v{b}, v{b+1}
                    v_cvt_pk_bf16_f32 v{t+1}, v{b+4}, v{b+5}
                    v_cvt_pk_bf16_f32 v{t+2}, v{b+2}, v{b+3}
                    v_cvt_pk_bf16_f32 v{t+3}, v{b+6}, v{b+7}
                    global_store_dwordx4 v{vo[ct]}, {v(t,4)}, s[4:5] offset:{h2*1024+up*512}""")
        st(g,9)
        g("s_endpgm")
    common_a(g, 8)
    g(f"""
    s_lshl_b32 s21, s16, 19
    s_add_u32 s20, s20, s21
    s_add_u32 s10, s10, s20
    s_addc_u32 s11, s11, 0
    s_lshl_b32 s21, s16, 6
    v_add_u32 v9, s21, v3
    """)
    def dma1(st):
        dmaA(8,st)
        for i in range(8):
            g(f"""s_add_u32 m0, s29, {65536*(st&1)+1024*i}
            s_add_u32 s30, s10, {65536*i}
            s_addc_u32 s31, s11, 0
            global_load_lds_dwordx4 v{5+(i&1)}, s[30:31]""")
        g("s_add_u32 s10, s10, 128\ns_addc_u32 s11, s11, 0")
    dma1(0); dma1(1); touchA(8); touchA(10); rdaddr()
    for i in range(4): g(f"v_add_u32 v{180+i}, s29, v{176+i}")
    g(f"""
    s_mul_i32 s20, s17, 401408
    s_lshl_b32 s21, s18, 11
    s_add_u32 s20, s20, s21
    s_add_u32 s4, s4, s20
    s_addc_u32 s5, s5, 0
    s_movk_i32 s22, 14336
    """)
    for ct in range(2):
        o=10+ct
        g(f"""
        v_add_u32 v12, {32*ct}, v9
        v_mov_b32 v13, 0
        v_cmp_le_u32 vcc, 112, v12
        v_addc_co_u32 v13, vcc, 0, v13, vcc
        v_cmp_le_u32 vcc, 224, v12
        v_addc_co_u32 v13, vcc, 0, v13, vcc
        v_cmp_le_u32 vcc, 336, v12
        v_addc_co_u32 v13, vcc, 0, v13, vcc
        v_mul_u32_u24 v14, 112, v13
        v_sub_u32 v12, v12, v14
        v_mul_u32_u24 v13, 7, v13
        v_lshrrev_b32 v14, 5, v12
        v_lshlrev_b32 v14, 1, v14
        v_bfe_u32 v15, v12, 2, 1
        v_add_u32 v14, v14, v15
        v_bfe_u32 v15, v12, 3, 2
        v_lshlrev_b32 v15, 2, v15
        v_and_b32 v1, 3, v12
        v_add_u32 v15, v15, v1
        v_subrev_u32 v1, 96, v12
        v_cmp_le_u32 vcc, 96, v12
        v_cndmask_b32 v14, v14, 6, vcc
        v_cndmask_b32 v15, v15, v1, vcc
        v_add_u32 v13, v13, v14
        v_mul_u32_u24 v13, s22, v13
        v_lshlrev_b32 v15, 4, v15
        v_lshlrev_b32 v14, 8, v4
        v_add3_u32 v{o}, v13, v14, v15
        """)
    def rd1(sg):
        b=SL+16*(sg&1)+32*(sg>>1)
        for h2 in range(2): g(f"ds_read_b128 {v(b+4*h2,4)}, v{176+sg} offset:{4096*h2}")
        for ct in range(2): g(f"ds_read_b128 {v(b+8+4*ct,4)}, v{180+sg} offset:{4096*ct}")
    def mm1(sg):
        b=SL+16*(sg&1)+32*(sg>>1)
        g(f"s_waitcnt lgkmcnt({4 if sg<3 else 0})")
        for h2 in range(2):
            for ct in range(2):
                A=ACC+(h2*2+ct)*16
                g(f"v_mfma_f32_32x32x16_bf16 {v(A,16)}, {v(b+4*h2,4)}, {v(b+8+4*ct,4)}, {v(A,16)}")
    mainloop(dma1, rd1, mm1)
    epi(g,[10,11])
    g("K1_MATB:\ns_sub_u32 s18, s18, 7")
    common_a(g, 12)
    g(f"""
    s_mul_i32 s20, s17, 229376
    s_add_u32 s14, s14, s20
    s_addc_u32 s15, s15, 0
    s_lshl_b32 s21, s16, 6
    v_lshlrev_b32 v9, 1, v3
    v_add_u32 v9, s21, v9
    v_mul_u32_u24 v180, 7168, v4
    v_lshl_add_u32 v180, v9, 1, v180
    v_add_u32 v180, 8192, v180
    v_lshlrev_b32 v12, 4, v2
    s_lshl_b32 s21, s16, 13
    v_add_u32 v5, s21, v12
    v_add_u32 v6, 4096, v5
    """)
    def dma2(st):
        dmaA(12,st)
        for i in range(8):
            if i%4==0: g(f"s_add_u32 m0, s29, {65536*(st&1)+1024*i}\ns_nop 0")
            g(f"global_load_lds_dwordx4 v{5+i//4}, s[14:15] offset:{1024*(i%4)}")
        g("s_add_u32 s14, s14, 57344\ns_addc_u32 s15, s15, 0")
    dma2(0); dma2(1); touchA(12)
    g("""s_lshl_b32 s21, s16, 14
    v_lshlrev_b32 v12, 7, v2
    v_add_u32 v12, s21, v12
    v_add_u32 v13, 8192, v12
    global_load_dword v186, v12, s[14:15]
    global_load_dword v187, v13, s[14:15]""")
    rdaddr()
    g(f"""
    s_lshl_b32 s20, s17, 1
    s_mul_i32 s20, s20, 14336
    s_lshl_b32 s21, s18, 11
    s_add_u32 s20, s20, s21
    s_add_u32 s20, s20, {WB}
    s_add_u32 s4, s4, s20
    s_addc_u32 s5, s5, 0
    s_mov_b32 s22, 458752
    s_movk_i32 s23, 14336
    v_lshrrev_b32 v12, 5, v9
    v_mul_lo_u32 v12, v12, s22
    v_bfe_u32 v13, v9, 4, 1
    v_mul_u32_u24 v13, s23, v13
    v_and_b32 v14, 15, v9
    v_lshlrev_b32 v14, 4, v14
    v_add3_u32 v12, v12, v13, v14
    v_lshlrev_b32 v14, 8, v4
    v_add_u32 v10, v12, v14
    v_add_u32 v11, 16, v10
    """)
    def rd2(sg):
        b=SL+16*sg
        for h2 in range(2): g(f"ds_read_b128 {v(b+4*h2,4)}, v{176+sg} offset:{4096*h2}")
        for i in range(8): g(f"ds_read_b32 v{b+8+i}, v180 offset:{14336*sg+896*i}")
    def mm2(sg):
        b=SL+16*sg; t=144+8*(sg&1)
        g(f"s_waitcnt lgkmcnt({10 if sg<3 else 0})")
        for u in range(2):
            for p in range(4):
                g(f"v_perm_b32 v{t+4*u+p}, v{b+8+2*p+1}, v{b+8+2*p}, s{24+u}")
        for h2 in range(2):
            for ct in range(2):
                A=ACC+(h2*2+ct)*16
                g(f"v_mfma_f32_32x32x16_bf16 {v(A,16)}, {v(b+4*h2,4)}, {v(t+4*ct,4)}, {v(A,16)}")
    mainloop(dma2, rd2, mm2)
    epi(g,[10,11])
    import struct
    f2u=lambda x: struct.unpack("<I",struct.pack("<f",x))[0]
    g(f"""
    K1_AUX:
    s_sub_u32 s17, s2, {NGEMM}
    s_mul_i32 s18, s17, 7
    s_add_u32 s18, s18, s16
    s_mul_i32 s19, s17, 448
    v_add_u32 v1, s19, v0
    v_and_b32 v3, 31, v2
    v_lshrrev_b32 v4, 5, v2
    v_and_b32 v5, 0x13, v3
    v_bfe_u32 v6, v3, 2, 1
    v_lshlrev_b32 v6, 3, v6
    v_bfe_u32 v7, v3, 3, 1
    v_lshlrev_b32 v7, 2, v7
    v_or3_b32 v5, v5, v6, v7
    s_movk_i32 s26, 9363
    s_movk_i32 s27, 448
    s_mov_b32 s28, {f2u(1.0/448)}
    s_waitcnt lgkmcnt(0)
    """)
    g(f"""
    s_add_u32 s30, s4, {MEMB+7168}
    s_addc_u32 s31, s5, 0
    v_mov_b32 v8, -1
    v_mov_b32 v9, -1
    v_mov_b32 v10, -1
    v_mov_b32 v11, -1
    v_lshlrev_b32 v12, 4, v1
    s_mov_b64 s[32:33], exec
    """)
    NCH=(FA-MEMB-7168)//16
    for i in range(5):
        g(f"""v_cmp_gt_u32 vcc, {NCH-14336*i if NCH-14336*i<14336 else 14336}, v1
        s_and_b64 exec, s[32:33], vcc
        global_store_dwordx4 v12, v[8:11], s[30:31]
        v_add_u32 v12, {14336*16}, v12""")
    g(f"""
    s_mov_b64 exec, s[32:33]
    s_add_u32 s30, s4, {MEM2+7168}
    s_addc_u32 s31, s5, 0
    v_lshlrev_b32 v12, 4, v1
    global_store_dwordx4 v12, v[8:11], s[30:31]
    v_add_u32 v12, {14336*16}, v12
    v_cmp_gt_u32 vcc, {28224-14336}, v1
    s_and_b64 exec, s[32:33], vcc
    global_store_dwordx4 v12, v[8:11], s[30:31]
    s_mov_b64 exec, s[32:33]
    s_add_u32 s30, s4, {FLG}
    s_addc_u32 s31, s5, 0
    v_mov_b32 v24, 0
    v_mov_b32 v25, 0
    v_mov_b32 v26, 0
    v_mov_b32 v27, 0
    v_lshlrev_b32 v12, 4, v1
    v_cmp_gt_u32 vcc, 4096, v1
    s_and_b64 exec, s[32:33], vcc
    global_store_dwordx4 v12, v[24:27], s[30:31]
    s_mov_b64 exec, s[32:33]
    s_cmp_lg_u32 s17, 0
    s_cbranch_scc1 K1_NOMEM
    v_and_b32 v13, 7, v0
    v_mul_u32_u24 v13, 896, v13
    v_lshrrev_b32 v14, 3, v0
    v_lshlrev_b32 v15, 4, v14
    v_add_u32 v15, v13, v15
    global_load_dwordx4 v[16:19], v15, s[6:7]
    s_add_u32 s30, s4, {MEMB}
    s_addc_u32 s31, s5, 0
    s_add_u32 s34, s4, {MEM2}
    s_addc_u32 s35, s5, 0
    s_waitcnt vmcnt(0)
    v_min_u32 v16, -2, v16
    v_min_u32 v17, -2, v17
    v_min_u32 v18, -2, v18
    v_min_u32 v19, -2, v19
    global_store_dwordx4 v12, v[16:19], s[30:31]
    global_store_dwordx4 v12, v[16:19], s[34:35]
    K1_NOMEM:
    v_lshlrev_b32 v12, 4, v2
    """)
    g(f"""
    s_load_dwordx2 s[36:37], s[0:1], {K_BX}
    v_mul_u32_u24 v13, 896, v3
    v_lshlrev_b32 v14, 3, v4
    v_add_u32 v13, v13, v14
    s_waitcnt lgkmcnt(0)
    """)
    for i in range(8):
        g(f"""
        s_add_u32 s20, s18, {224*i}
        s_mul_i32 s21, s20, 2341
        s_lshr_b32 s21, s21, 16
        s_mul_i32 s22, s21, 28
        s_sub_u32 s22, s20, s22
        s_mul_i32 s21, s21, 28672
        s_lshl_b32 s22, s22, 5
        s_add_u32 s21, s21, s22
        s_add_u32 s30, s36, s21
        s_addc_u32 s31, s37, 0
        global_load_dwordx2 {v(64+4*i,2)}, v13, s[30:31]
        global_load_dwordx2 {v(66+4*i,2)}, v13, s[30:31] offset:16
        """)
    g(f"""
    v_and_b32 v15, 15, v2
    v_bfe_u32 v16, v15, 2, 1
    v_lshlrev_b32 v16, 4, v16
    v_bfe_u32 v17, v15, 1, 1
    v_lshl_add_u32 v16, v17, 3, v16
    v_lshrrev_b32 v17, 3, v15
    v_lshl_add_u32 v16, v17, 2, v16
    v_and_b32 v17, 1, v15
    v_add_u32 v16, v16, v17
    v_mul_u32_u24 v16, 896, v16
    v_lshrrev_b32 v17, 4, v2
    v_lshl_add_u32 v28, v17, 4, v16
    v_and_b32 v17, 1, v17
    v_lshl_add_u32 v29, v17, 4, v16
    v_mul_u32_u24 v17, 1792, v4
    v_add_u32 v29, v29, v17
    """)
    for i in range(8):
        g(f"""
        s_add_u32 s20, s18, {224*i}
        s_mul_i32 s21, s20, 2341
        s_lshr_b32 s21, s21, 16
        s_mul_i32 s22, s21, 28
        s_sub_u32 s22, s20, s22
        s_mul_i32 s21, s21, 28672
        s_mul_i32 s23, s22, 9363
        s_lshr_b32 s23, s23, 16
        s_mul_i32 s24, s23, 7
        s_sub_u32 s22, s22, s24
        s_mul_i32 s23, s23, 224
        s_add_u32 s21, s21, s23
        s_lshr_b32 s23, s22, 1
        s_lshl_b32 s23, s23, 6
        s_add_u32 s21, s21, s23
        s_and_b32 s23, s22, 1
        s_mul_i32 s23, s23, 1792
        s_add_u32 s21, s21, s23
        s_add_u32 s30, s36, s21
        s_addc_u32 s31, s37, 0
        s_cmp_eq_u32 s22, 6
        s_cselect_b64 vcc, -1, 0
        v_cndmask_b32 v30, v28, v29, vcc
        global_load_dwordx4 {v(96+4*i,4)}, v30, s[30:31]
        """)
    N=2048*448
    for it in range(4):
        o=32+it*4
        g(f"s_add_u32 s20, s18, {224*(it&1)}")
        if it<2:
            g(f"""
            s_mul_i32 s21, s20, 2341
            s_lshr_b32 s21, s21, 16
            s_mul_i32 s22, s21, 28
            s_sub_u32 s22, s20, s22
            s_lshr_b32 s23, s21, 1
            s_lshl_b32 s23, s23, 5
            v_add_u32 v13, s23, v5
            s_lshl_b32 s22, s22, 4
            v_lshlrev_b32 v14, 3, v4
            v_add_u32 v14, s22, v14
            s_and_b32 s21, s21, 1
            s_cmp_eq_u32 s21, 0
            s_cselect_b32 s21, 0x3e800000, 0
            v_cmp_ge_u32 vcc, 224, v13
            v_cndmask_b32 v15, 0, 1.0, vcc
            """)
            for e in range(8):
                g(f"v_add_u32 v16, {e}, v14\nv_mul_u32_u24 v16, v13, v16")
                magic448(g,16,17,0,26,27)
                g(f"v_cvt_f32_u32 v16, v16\nv_mov_b32 v17, s21\nv_fma_f32 v16, v16, s28, v17\nv_sin_f32 v16, v16\ns_nop 0\nv_mul_f32 v{20+e}, v16, v15")
        else:
            g(f"""
            s_lshr_b32 s21, s20, 5
            s_lshl_b32 s21, s21, 5
            v_add_u32 v13, s21, v5
            s_and_b32 s22, s20, 31
            s_lshr_b32 s23, s22, 3
            s_lshl_b32 s23, s23, 6
            s_bfe_u32 s21, s22, 0x10002
            s_add_u32 s23, s23, s21
            s_and_b32 s21, s22, 1
            s_lshl_b32 s21, s21, 5
            s_add_u32 s23, s23, s21
            v_lshlrev_b32 v14, 3, v4
            v_add_u32 v14, s23, v14
            s_bitcmp1_b32 s22, 1
            s_cselect_b32 s21, 0x3f000000, 0x3e800000
            """)
            for e in range(8):
                g(f"""v_add_u32 v18, {16*(e>>2)+2*(e&3)}, v14
                v_mul_u32_u24 v16, v13, v18""")
                magic448(g,16,17,0,26,27)
                g(f"""v_cvt_f32_u32 v16, v16
                v_mov_b32 v17, s21
                v_fma_f32 v16, v16, s28, v17
                v_sin_f32 v16, v16
                v_mov_b32 v15, {f2u(2.0/N)}
                v_mov_b32 v17, {f2u(1.0/N)}
                v_cmp_eq_u32 vcc, 0, v18
                v_cndmask_b32 v15, v15, v17, vcc
                v_cmp_eq_u32 vcc, 224, v18
                v_cndmask_b32 v15, v15, v17, vcc
                v_cmp_gt_u32 vcc, 225, v18
                v_cndmask_b32 v15, 0, v15, vcc
                v_mul_f32 v{20+e}, v16, v15""")
        for p in range(4): g(f"v_cvt_pk_bf16_f32 v{o+p}, v{20+2*p}, v{21+2*p}")
        g(f"""s_lshl_b32 s20, s20, 10
        s_add_u32 s20, s20, {TF if it<2 else TI}
        s_add_u32 s30, s4, s20
        s_addc_u32 s31, s5, 0
        global_store_dwordx4 v12, {v(o,4)}, s[30:31]""")
    g("s_waitcnt vmcnt(4)")
    for i in range(8):
        g(f"""
        s_add_u32 s20, s18, {224*i}
        s_lshl_b32 s20, s20, 10
        s_add_u32 s20, s20, {XP}
        s_add_u32 s30, s4, s20
        s_addc_u32 s31, s5, 0
        v_swap_b32 v{65+4*i}, v{66+4*i}
        s_nop 0
        global_store_dwordx4 v12, {v(64+4*i,4)}, s[30:31]
        s_add_u32 s30, s30, {XA-XP}
        s_addc_u32 s31, s31, 0
        global_store_dwordx4 v12, {v(96+4*i,4)}, s[30:31]
        """)
    st(g,9)
    g("K1_END:")
    return ("k1_kernel", g.text(), 192, 192, NGEMM+NAUX, 448, 131072)
```

```python
from gbase import *
from ggemm import *
from gteam import *
from gfft import *
from gpost import *
import os
TS=int(os.environ.get("TS","0"))
def claimq(g, p, nq, n, tag):
    nl,nh = n if isinstance(n,tuple) else (n,n)
    g(f"""
    s_waitcnt vmcnt(0)
    s_barrier
    s_cmp_lg_u32 s16, 0
    s_cbranch_scc1 {tag}_C1
    s_mov_b64 exec, 1
    v_mov_b32 v2, 1
    s_cmp_eq_u32 s51, 0
    s_cbranch_scc1 {tag}_T
    v_mov_b32 v1, s51
    v_mov_b32 v3, s52
    global_atomic_add v1, v3, s[4:5] sc1
    {tag}_T:
    s_lshl_b32 s20, s17, 8
    s_add_u32 s20, s20, {F_Q+p*2048}
    v_mov_b32 v1, s20
    global_atomic_add v3, v1, v2, s[4:5] sc0 sc1
    s_cmp_lt_u32 s17, 4
    s_cselect_b32 s20, {nl}, {nh}
    s_waitcnt vmcnt(0)
    v_readfirstlane_b32 s18, v3
    s_cmp_lt_u32 s18, s20
    s_cbranch_scc1 {tag}_W
    s_mov_b32 s18, -1""")
    if nq>1:
        g(f"""
        s_mov_b64 exec, {(1<<nq)-1}
        v_lshlrev_b32 v1, 8, v0
        v_add_u32 v1, {F_Q+p*2048}, v1
        global_load_dword v3, v1, s[4:5] sc1
        v_mov_b32 v4, {nh}
        v_mov_b32 v5, {nl}
        v_cmp_gt_u32 vcc, 4, v0
        v_cndmask_b32 v4, v4, v5, vcc
        s_waitcnt vmcnt(0)
        v_cmp_lt_u32 vcc, v3, v4
        s_mov_b64 exec, 1
        s_cbranch_vccz {tag}_W
        s_ff1_i32_b32 s17, vcc_lo
        s_branch {tag}_T""")
    g(f"""
    {tag}_W:
    v_mov_b32 v1, 0x27F00
    v_mov_b32 v2, s18
    v_mov_b32 v3, s17
    ds_write_b64 v1, v[2:3]
    s_mov_b64 exec, -1
    s_waitcnt lgkmcnt(0)
    {tag}_C1:
    s_barrier
    v_mov_b32 v1, 0x27F00
    ds_read_b64 v[2:3], v1
    s_mov_b32 s51, 0
    s_mov_b32 s52, 1
    s_waitcnt lgkmcnt(0)
    v_readfirstlane_b32 s18, v2
    v_readfirstlane_b32 s17, v3
    """)
def stamp(g, i):
    if TS:
        L=g.lab("TS")
        g(f"""s_cmp_lg_u32 s16, 0
        s_cbranch_scc1 {L}
        s_memrealtime s[20:21]
        s_lshl_b32 s22, s2, 6
        s_add_u32 s22, s22, {WSEND+0x10000+4*i}
        v_mov_b32 v1, s22
        s_waitcnt lgkmcnt(0)
        v_mov_b32 v2, s20
        global_store_dword v1, v2, s[4:5]
        {L}:""")
def k2(prof=False, spread=False):
    g=G()
    g(f"""s_cmp_ge_u32 s2, 256
    s_cbranch_scc1 K2_END
    s_load_dwordx2 s[4:5], s[0:1], {K_WS}
    s_load_dwordx2 s[6:7], s[0:1], {K_OUT}
    s_load_dwordx2 s[8:9], s[0:1], {K_BX}
    s_load_dwordx2 s[10:11], s[0:1], {K_AX}
    s_load_dwordx4 s[12:15], s[0:1], {K_WR}
    s_getreg_b32 s19, hwreg(HW_REG_XCC_ID)
    s_and_b32 s19, s19, 15
    v_lshrrev_b32 v1, 6, v0
    s_nop 0
    v_readfirstlane_b32 s16, v1
    s_mov_b32 s51, 0
    s_sub_u32 s50, s19, 1
    s_cmp_ge_u32 s50, 7
    s_cselect_b32 s50, 0, s50
    s_waitcnt lgkmcnt(0)""")
    stamp(g,0)
    if spread==1: g("s_branch K2_WORK")
    elif spread==2: g("s_cmp_ge_u32 s2, 40\ns_cbranch_scc1 K2_WORK")
    else: g("s_cmp_lg_u32 s19, 0\ns_cbranch_scc1 K2_WORK")
    claim(g, F_ROLE, 17, "R0")
    g("s_cmp_lt_u32 s17, 32\ns_cbranch_scc1 K2_TEAM\nK2_WORK:")
    def phase(p, nq, n, fn, tag, sig=None):
        g(f"s_mov_b32 s17, {'s50' if nq>1 else 0}\n{tag}_L:")
        claimq(g,p,nq,n,tag)
        g(f"s_cmp_eq_u32 s18, -1\ns_cbranch_scc1 {tag}_X")
        if sig: g(f"s_mov_b32 s51, {sig}")
        fn(g)
        g(f"s_branch {tag}_L\n{tag}_X:")
        stamp(g,p+1)
    def w(off,n,tag):
        def f(g):
            g(f"s_mov_b32 s24, {off}"); wait_flag(g,24,n,tag,"K2_EXIT")
        return f
    phase(6,1,224, lambda g: gemm_item(g,"VX",first=True), "PV0")
    phase(0,7,56, lambda g: gemm_item(g,"VX"), "PVX")
    claim(g, F_ROLE+128, 17, "RG")
    g("s_cmp_lt_u32 s17, 28\ns_cbranch_scc1 K2_GAMMA")
    phase(1,1,128, f1, "PF1", F_F1)
    phase(2,7,(40,32), lambda g: gemm_item(g,"QX"), "PQX")
    phase(3,1,32, lambda g: f2(g,w(F_F1,128,"W1")), "PF2", F_F2)
    phase(4,1,128, lambda g: f3(g,w(F_F2,32,"W2")), "PF3")
    claim(g, F_ROLE, 17, "R1")
    g("s_cmp_lt_u32 s17, 32\ns_cbranch_scc1 K2_TEAM")
    phase(5,1,512, lambda g: post(g,flags=True), "PPO")
    g("K2_EXIT:\ns_waitcnt vmcnt(0)\ns_endpgm\nK2_GAMMA:")
    beta(g,gamma=True)
    g("K2_TEAM:")
    team_entry(g,prof,flags=True)
    g("K2_END:")
    return ("k2_kernel", g.text(), 512, 256, 256, 256, 160*1024)
```

```python
from gbase import *
import math
SPIN=2000000
from ggemm import VXN
NVX=224
M16="v_mfma_f32_16x16x32_bf16"
def wait_flag(g, off_sgpr, cond, tag, exit_lab, n=1, sleep=8):
    L=g.lab(tag)
    g(f"""v_mov_b32 v10, s{off_sgpr}
    s_mov_b32 s41, 0
    {L}:""")
    if n==1: g(f"global_load_dword v12, v10, s[4:5] sc1")
    else: g(f"global_load_dwordx4 v[12:15], v10, s[4:5] sc1")
    g(f"""s_add_u32 s41, s41, 1
    s_cmp_gt_u32 s41, {SPIN}
    s_cbranch_scc1 {exit_lab}
    s_waitcnt vmcnt(0)""")
    if n==4: g("v_min3_u32 v12, v12, v13, v14\nv_min_u32 v12, v12, v15")
    g(f"""v_readfirstlane_b32 s42, v12
    {"s_cmp_lg_u32 s42, -1" if cond is None else f"s_cmp_ge_u32 s42, {cond}"}
    s_cbranch_scc1 {L}_D
    s_sleep {sleep}
    s_branch {L}
    {L}_D:""")

def post(g, flags=False, exit_lab="K2_EXIT"):
    XF=16; VF=128; SA=224
    g(f"""
    v_and_b32 v2, 63, v0
    v_and_b32 v3, 15, v2
    v_lshrrev_b32 v4, 4, v2
    s_lshr_b32 s20, s18, 3
    s_bfe_u32 s21, s18, 0x10002
    s_and_b32 s22, s18, 3
    s_lshl_b32 s22, s22, 2
    s_add_u32 s22, s22, s16
    """)
    if flags:
        g(f"s_lshr_b32 s23, s20, 3\ns_lshl_b32 s23, s23, 8\ns_add_u32 s24, s23, {F_QX}")
        wait_flag(g,24,32,"PQ",exit_lab)
        g(f"s_add_u32 s24, s23, {F_VX}")
        wait_flag(g,24,NVX,"PV",exit_lab)
    g(f"""
    s_mul_i32 s23, s20, 458752
    s_mul_i32 s24, s16, {4*28672}
    s_add_u32 s24, s24, s23
    s_add_u32 s24, s24, {QX}
    s_add_u32 s30, s4, s24
    s_addc_u32 s31, s5, 0
    s_lshl_b32 s24, s22, 15
    s_add_u32 s24, s24, s23
    s_add_u32 s24, s24, {VX}
    s_add_u32 s32, s4, s24
    s_addc_u32 s33, s5, 0
    s_mul_i32 s24, s20, 28672
    s_add_u32 s24, s24, {XP}
    s_add_u32 s34, s4, s24
    s_addc_u32 s35, s5, 0
    v_lshlrev_b32 v5, 9, v4
    s_lshl_b32 s24, s21, 8
    v_lshl_add_u32 v6, v3, 4, v5
    v_add_u32 v6, s24, v6
    v_bfe_u32 v8, v3, 2, 1
    v_lshrrev_b32 v9, 3, v3
    v_and_b32 v10, 3, v3
    v_lshlrev_b32 v7, 8, v8
    v_lshl_add_u32 v7, v9, 6, v7
    v_lshl_add_u32 v7, v10, 4, v7
    v_add_u32 v7, v7, v5
    v_lshlrev_b32 v11, 7, v8
    v_lshl_add_u32 v11, v10, 4, v11
    v_lshl_add_u32 v8, v9, 10, v11
    v_lshl_add_u32 v8, v4, 8, v8
    v_lshl_add_u32 v9, v9, 8, v11
    v_add_u32 v9, v9, v5
    """)
    for k in range(14):
        if k and k%2==0: g("v_add_u32 v7, 4096, v7")
        for jt in range(2): g(f"global_load_dwordx4 {v(XF+8*k+4*jt,4)}, v7, s[34:35] offset:{2048*(k%2)+128*jt}")
    for i in range(56):
        if i and i%2==0: g("v_add_u32 v6, 4096, v6")
        g(f"global_load_dwordx4 {a(4*i,4)}, v6, s[30:31] offset:{2048*(i%2)}")
    L1=g.lab("PO")
    g(f"s_waitcnt vmcnt(30)\ns_cmp_ge_u32 s22, 14\ns_cbranch_scc1 {L1}")
    for h in range(16):
        if h and h%2==0: g("v_add_u32 v8, 4096, v8")
        for ct in range(2): g(f"global_load_dwordx4 {v(VF+8*h+4*ct,4)}, v8, s[32:33] offset:{2048*(h%2)+64*ct}")
    g(f"s_waitcnt vmcnt(32)\ns_branch {L1}_B\n{L1}:\ns_waitcnt vmcnt(0)\n{L1}_B:")
    for k in range(14):
        for hh in range(4):
            for jt in range(2):
                A=a(SA+8*hh+4*jt,4)
                g(f"{M16} {A}, {v(XF+8*k+4*jt,4)}, {a(56*hh+4*k,4)}, {A if k else 0}")
    g(f"""s_lshl_b32 s24, s21, 4
    v_and_b32 v10, 1, v4
    v_lshlrev_b32 v10, 4, v10
    v_lshrrev_b32 v11, 1, v4
    v_lshl_add_u32 v10, v11, 2, v10
    v_sub_u32 v10, v3, v10
    v_add_u32 v10, s24, v10
    v_mov_b32 v11, 0xff800000""")
    for e in range(8): g(f"v_cmp_gt_i32 s[{60+2*e}:{61+2*e}], {8*(e>>2)+(e&3)}, v10")
    SX=64; MEM=16; R=44; T=96
    for i in range(32):
        g(f"v_accvgpr_read_b32 v{SX+i}, a{SA+i}\nv_cndmask_b32 v{SX+i}, v{SX+i}, v11, s[{60+2*(i&7)}:{61+2*(i&7)}]")
    for hh in range(4):
        x=SX+8*hh
        g(f"""v_max3_f32 v{T+hh}, v{x}, v{x+1}, v{x+2}
        v_max3_f32 v{T+hh}, v{T+hh}, v{x+3}, v{x+4}
        v_max3_f32 v{T+hh}, v{T+hh}, v{x+5}, v{x+6}
        v_max_f32 v{T+hh}, v{T+hh}, v{x+7}""")
    for p in range(2):
        g(f"v_permlane32_swap_b32 v{T+p}, v{T+p+2}\nv_max_f32 v{T+p}, v{T+p}, v{T+p+2}")
    for i in range(16): g(f"v_mov_b32 v{R+i}, 0")
    g(f"""v_mov_b32 v113, 0x4444
    v_mov_b32 v116, 0xeeee
    v_cmp_gt_u32 vcc, 8, v3
    v_cndmask_b32 v113, v116, v113, vcc
    s_mov_b32 s43, {f2u(math.log2(math.e)/16)}
    s_mul_i32 s24, s20, 7168
    s_add_u32 s24, s24, {MEM2}
    s_add_u32 s36, s4, s24
    s_addc_u32 s37, s5, 0
    v_lshlrev_b32 v5, 4, v2
    v_add_u32 v6, 4096, v5""")
    if flags:
        L=g.lab("PO")
        g(f"s_cmp_eq_u32 s20, 0\ns_cbranch_scc1 {L}\ns_mul_i32 s24, s20, 7168\ns_add_u32 s24, s24, {MEM2-4}")
        wait_flag(g,24,None,"PS",exit_lab)
        g(f"{L}:")
    L=g.lab("PM")
    g(f"s_mov_b32 s41, 0\n{L}:")
    for kk in range(7): g(f"global_load_dwordx4 {v(MEM+4*kk,4)}, v{5+kk//4}, s[36:37] offset:{1024*(kk%4)} sc1")
    g(f"""s_add_u32 s41, s41, 1
    s_cmp_gt_u32 s41, {SPIN}
    s_cbranch_scc1 {exit_lab}
    s_waitcnt vmcnt(0)
    v_max_u32 v12, v{MEM}, v{MEM+1}""")
    for i in range(13): g(f"v_max3_u32 v12, v12, v{MEM+2+2*i}, v{MEM+3+2*i}")
    g(f"v_cmp_eq_u32 vcc, -1, v12\ns_cbranch_vccnz {L}")
    for kk in range(7):
        for hh in range(4): g(f"v_smfmac_f32_16x16x64_bf16 {v(R+4*hh,4)}, {v(MEM+4*kk,4)}, {a(56*hh+8*kk,8)}, v113")
    for p in range(2):
        A=R+4*p; B=R+4*(p+2); m=T+p; t=T+4
        for i in range(4): g(f"v_permlane32_swap_b32 v{A+i}, v{B+i}")
        g(f"""v_pk_add_f32 {v(A,2)}, {v(A,2)}, {v(B,2)}
        v_pk_add_f32 {v(A+2,2)}, {v(A+2,2)}, {v(B+2,2)}
        v_max3_f32 v{m}, v{m}, v{A}, v{A+1}
        v_max3_f32 v{m}, v{m}, v{A+2}, v{A+3}
        v_mov_b32 v{t}, v{m}
        v_permlane16_swap_b32 v{m}, v{t}
        v_max_f32 v{m}, v{m}, v{t}
        v_mul_f32 v{m}, s43, v{m}""")
        for i in range(4): g(f"v_fma_f32 v{A+i}, v{A+i}, s43, -v{m}\nv_exp_f32 v{A+i}, v{A+i}")
        g(f"v_mov_b32 v{t}, v{m}\nv_permlane32_swap_b32 v{m}, v{t}")
        for hh,mm in ((p,m),(p+2,t)):
            x=SX+8*hh
            for i in range(8): g(f"v_fma_f32 v{x+i}, v{x+i}, s43, -v{mm}\nv_exp_f32 v{x+i}, v{x+i}")
        for hh,mm in ((p,m),(p+2,t)):
            x=SX+8*hh
            g(f"v_add_f32 v{mm}, v{x}, v{x+1}")
            for i in range(2,8): g(f"v_add_f32 v{mm}, v{mm}, v{x+i}")
        g(f"""v_permlane32_swap_b32 v{m}, v{t}
        v_add_f32 v{m}, v{m}, v{t}
        v_add_f32 v{t}, v{A}, v{A+1}
        v_add_f32 v{m}, v{m}, v{A+2}
        v_add_f32 v{t}, v{t}, v{A+3}
        v_add_f32 v{m}, v{m}, v{t}
        v_mov_b32 v{t}, v{m}
        v_permlane16_swap_b32 v{m}, v{t}
        v_add_f32 v{m}, v{m}, v{t}
        v_rcp_f32 v{m}, v{m}""")
        for i in range(4): g(f"v_mul_f32 v{A+i}, v{A+i}, v{m}")
        g(f"""v_cvt_pk_bf16_f32 v{104+2*p}, v{A}, v{A+1}
        v_cvt_pk_bf16_f32 v{105+2*p}, v{A+2}, v{A+3}
        v_mov_b32 v{t}, v{m}
        v_permlane32_swap_b32 v{m}, v{t}""")
        if p==0: g("s_lshl_b32 s24, s16, 12\nv_add_u32 v6, s24, v5\ns_lshl_b32 s24, s16, 10\nv_add_u32 v7, s24, v5")
        for hh,mm in ((p,m),(p+2,t)):
            x=SX+8*hh
            for i in range(8): g(f"v_mul_f32 v{x+i}, v{x+i}, v{mm}")
            for i in range(4): g(f"v_cvt_pk_bf16_f32 v{x+i}, v{x+2*i}, v{x+2*i+1}")
            g(f"ds_write_b128 v6, {v(x,4)} offset:{1024*hh}")
    Le=g.lab("PE")
    g(f"""ds_write_b128 v7, v[104:107] offset:16384
    s_waitcnt lgkmcnt(0)
    s_barrier
    s_cmp_ge_u32 s22, 14
    s_cbranch_scc1 {Le}""")
    for i in range(20): g(f"ds_read_b128 {a(4*i,4)}, v5 offset:{1024*i}")
    O=96; UF=16
    for h in range(16):
        g(f"s_waitcnt lgkmcnt({min(15,19-h)})")
        for ct in range(2): g(f"{M16} {v(O+4*ct,4)}, {v(VF+8*h+4*ct,4)}, {a(4*h,4)}, {v(O+4*ct,4) if h else 0}")
    if flags:
        g(f"s_lshl_b32 s24, s20, 8\ns_lshl_b32 s25, s22, 4\ns_add_u32 s24, s24, s25\ns_add_u32 s24, s24, {F_STEP}")
        wait_flag(g,24,1,"PU",exit_lab,n=4,sleep=2)
    g(f"""s_mul_i32 s24, s20, 114688
    s_lshl_b32 s25, s22, 13
    s_add_u32 s24, s24, s25
    s_add_u32 s24, s24, {UB}
    s_add_u32 s36, s4, s24
    s_addc_u32 s37, s5, 0
    v_add_u32 v10, 4096, v9""")
    for q in range(4):
        for ct in range(2): g(f"global_load_dwordx4 {v(UF+8*q+4*ct,4)}, v{9+q//2}, s[36:37] offset:{2048*(q%2)+64*ct} sc1")
    g(f"""s_lshl_b32 s24, s20, 5
    s_lshl_b32 s25, s21, 4
    s_add_u32 s24, s24, s25
    s_mul_i32 s24, s24, 1792
    s_lshl_b32 s25, s22, 6
    s_add_u32 s24, s24, s25
    s_add_u32 s24, s24, 896
    s_add_u32 s30, s6, s24
    s_addc_u32 s31, s7, 0
    v_mul_u32_u24 v5, 1792, v3
    v_lshl_add_u32 v5, v4, 4, v5
    s_waitcnt lgkmcnt(0)""")
    for q in range(4):
        g(f"s_waitcnt vmcnt({6-2*q})")
        for ct in range(2): g(f"{M16} {v(O+4*ct,4)}, {v(UF+8*q+4*ct,4)}, {a(64+4*q,4)}, {v(O+4*ct,4)}")
    for p in range(4): g(f"v_cvt_pk_bf16_f32 v{104+p}, v{O+2*p}, v{O+2*p+1}")
    g(f"global_store_dwordx4 v5, v[104:107], s[30:31]\n{Le}:")
```

```python
from gbase import *
import math
import os
SPIN=2000000
from ggemm import VXN
from gpost import wait_flag
PFD=int(os.environ.get('PFD','4'))
ESL=int(os.environ.get('ESL','20'))
NVX=224
TM=os.environ.get('TM','s_memtime')
PD=int(os.environ.get('PD','1'))
SLC=int(os.environ.get('SLC','0'))
PSL=int(os.environ.get('PSL','2'))
PIPE=int(os.environ.get('PIPE','0'))
PFS=int(os.environ.get('PFS','128'))
SLA=eval(os.environ.get('SLA','(16,8)'))
SLB=eval(os.environ.get('SLB','None'))
def wreg_a(b): return r(256+8*b,8) if b<32 else r(120+8*(b-32),8)
def wreg_b(b): return r(256+8*b,8) if b<32 else r(128+8*(b-32),8)
def sub(reg8, half):
    import re
    m=re.match(r'([va])\[(\d+):',reg8); b=int(m.group(2))+4*half
    return f"{m.group(1)}[{b}:{b+3}]"

def team_sync(g, tag):
    g(f"""
    s_add_u32 s36, s4, {F_XCC}
    s_addc_u32 s37, s5, 0
    v_and_b32 v98, 63, v0
    v_min_u32 v98, 31, v98
    v_lshlrev_b32 v98, 2, v98
    s_mov_b32 s41, 0
    {tag}_TS:
    global_load_dword v99, v98, s[36:37] sc1
    s_add_u32 s41, s41, 1
    s_cmp_gt_u32 s41, {SPIN}
    s_cbranch_scc1 {tag}_EXIT
    s_waitcnt vmcnt(0)
    v_cmp_eq_u32 vcc, 0, v99
    s_cbranch_vccnz {tag}_TS
    s_add_u32 s41, s19, 1
    v_cmp_ne_u32 vcc, s41, v99
    s_mov_b32 s40, 1
    s_cbranch_vccz {tag}_TS2
    s_mov_b32 s40, 0
    {tag}_TS2:
    """)

def poll_mem(g, tag, P, vP0, vP1, P2=None):
    iss=lambda X: f"global_load_dwordx4 {v(X,4)}, v{vP0}, s[30:31] sc1\nglobal_load_dwordx4 {v(X+4,4)}, v{vP1}, s[30:31] sc1"
    chk=lambda X: f"""v_max3_u32 v116, v{X}, v{X+1}, v{X+2}
    v_max3_u32 v117, v{X+3}, v{X+4}, v{X+5}
    v_max3_u32 v116, v116, v{X+6}, v{X+7}
    v_max_u32 v116, v116, v117
    v_cmp_eq_u32 vcc, -1, v116"""
    wr=lambda X: f"ds_write_b128 v{vP0}, {v(X,4)}\nds_write_b128 v{vP1}, {v(X+4,4)}"
    if P2 is None:
        g(f"""
        s_mov_b32 s41, 0
        {tag}_PM:
        {iss(P)}
        s_add_u32 s41, s41, 1
        s_cmp_gt_u32 s41, {SPIN}
        s_cbranch_scc1 {tag}_EXIT
        s_waitcnt vmcnt(0)
        {chk(P)}
        s_cbranch_vccnz {tag}_PM
        {wr(P)}
        """)
    else:
        g(f"""
        s_mov_b32 s41, 0
        {iss(P)}
        s_sleep {PSL}
        {tag}_PM:
        {iss(P2)}
        s_add_u32 s41, s41, 1
        s_cmp_gt_u32 s41, {SPIN}
        s_cbranch_scc1 {tag}_EXIT
        s_waitcnt vmcnt(2)
        {chk(P)}
        s_cbranch_vccz {tag}_PA
        {iss(P)}
        s_waitcnt vmcnt(2)
        {chk(P2)}
        s_cbranch_vccnz {tag}_PM
        {wr(P2)}
        s_branch {tag}_PJ
        {tag}_PA:
        {wr(P)}
        {tag}_PJ:
        """)
    g("s_waitcnt lgkmcnt(0)\ns_barrier")

def common_setup(g):
    g(f"""
    v_and_b32 v118, 63, v0
    v_lshrrev_b32 v119, 4, v118
    v_and_b32 v117, 15, v118
    s_mul_i32 s20, s16, 112
    v_add_u32 v0, s20, v118
    v_add_u32 v1, 64, v0
    v_min_u32 v1, 447, v1
    v_lshlrev_b32 v0, 4, v0
    v_lshlrev_b32 v1, 4, v1
    v_lshlrev_b32 v2, 4, v118
    v_mov_b32 v113, 0x4444
    v_mov_b32 v116, 0xeeee
    v_cmp_gt_u32 vcc, 8, v117
    v_cndmask_b32 v113, v116, v113, vcc
    s_add_u32 s30, s4, {MEMB}
    s_addc_u32 s31, s5, 0
    s_add_u32 s32, s4, {PB}
    s_addc_u32 s33, s5, 0
    """)

def alpha(g, prof=False):
    MEM=8; Tb=56; TTb=62; KEY=68; KEY6=80; S=86; PL=98
    acc={0:36,1:40,6:44,2:48,3:52,4:98,5:102}
    vP0,vP1,vL,vK,vK2,vX0,vX1,vX2=range(8); vXR,vXR2,vPW,vPR1,vPR2,vS1,vS2=range(106,113); IDX=113; I2=114
    g(f"""
    s_mul_i32 s20, s17, 401408
    s_mul_i32 s21, s16, 100352
    s_add_u32 s20, s20, s21
    s_add_u32 s36, s4, s20
    s_addc_u32 s37, s5, 0
    v_and_b32 v119, 63, v0
    v_lshlrev_b32 v119, 4, v119
    """)
    for b in range(49):
        if b and b%2==0: g("v_add_u32 v119, 4096, v119")
        for h2 in range(2): g(f"global_load_dwordx4 {sub(wreg_a(b),h2)}, v119, s[36:37] offset:{(b%2)*2048+h2*1024}")
    team_sync(g,"AL")
    common_setup(g)
    g(f"""
    s_mul_i32 s20, s16, 14
    v_add_u32 v3, s20, v119
    v_lshlrev_b32 v3, 7, v3
    v_and_b32 v116, 7, v118
    v_lshl_add_u32 v3, v116, 4, v3
    s_add_u32 s20, s20, 12
    v_lshrrev_b32 v4, 1, v119
    v_add_u32 v4, s20, v4
    v_lshlrev_b32 v4, 7, v4
    v_lshl_add_u32 v4, v116, 4, v4
    v_and_b32 v98, 1, v119
    v_lshl_add_u32 v4, v98, 3, v4
    s_mul_i32 s20, s16, 7168
    v_add_u32 v5, s20, v2
    v_add_u32 v6, 4096, v5
    s_lshl_b32 s42, s16, 13
    s_add_u32 s42, s42, 0x8000
    v_add_u32 v{vXR}, s42, v2
    v_lshrrev_b32 v100, 1, v119
    v_lshl_add_u32 v100, v100, 4, v117
    v_lshlrev_b32 v100, 4, v100
    v_lshl_add_u32 v100, v98, 3, v100
    v_add_u32 v100, 6144, v100
    v_add_u32 v{vXR2}, s42, v100
    s_mul_i32 s20, s16, 3072
    s_add_u32 s20, s20, 0x2000
    v_add_u32 v{vPW}, s20, v2
    v_bfe_u32 v103, v118, 1, 3
    v_bfe_u32 v100, v118, 4, 1
    v_lshrrev_b32 v102, 5, v118
    v_and_b32 v104, 1, v118
    v_lshl_add_u32 v105, v102, 1, v104
    v_lshlrev_b32 v101, 10, v100
    v_lshl_add_u32 v101, v105, 8, v101
    v_lshl_add_u32 v101, v103, 4, v101
    v_add_u32 v{vPR1}, 0x2000, v101
    v_lshlrev_b32 v101, 8, v100
    v_lshl_add_u32 v101, v103, 4, v101
    v_lshl_add_u32 v101, v105, 2, v101
    v_add_u32 v{vPR2}, 0x2800, v101
    v_lshlrev_b32 v101, 3, v118
    s_lshl_b32 s20, s17, 9
    v_add_u32 v{vS1}, s20, v101
    v_lshlrev_b32 v101, 7, v102
    v_lshl_add_u32 v101, v103, 4, v101
    v_lshl_add_u32 v101, v100, 3, v101
    v_lshl_add_u32 v101, v104, 1, v101
    s_lshr_b32 s20, s17, 1
    s_lshl_b32 s20, s20, 8
    s_and_b32 s21, s17, 1
    s_lshl_b32 s21, s21, 2
    s_add_u32 s20, s20, s21
    s_add_u32 s20, s20, 8192
    v_add_u32 v{vS2}, s20, v101
    v_lshlrev_b32 v100, 2, v98
    v_sub_u32 v100, v117, v100
    v_mov_b32 v101, 0x3f80
    v_mov_b32 v102, 0x3f800000
    v_cmp_eq_u32 vcc, 0, v100
    v_cndmask_b32 v114, 0, v101, vcc
    v_cmp_eq_u32 vcc, 1, v100
    v_cndmask_b32 v114, v114, v102, vcc
    v_cmp_eq_u32 vcc, 2, v100
    v_cndmask_b32 v115, 0, v101, vcc
    v_cmp_eq_u32 vcc, 3, v100
    v_cndmask_b32 v115, v115, v102, vcc
    s_add_u32 s34, s4, {XA}
    s_addc_u32 s35, s5, 0
    s_mov_b32 s43, {f2u(math.log2(math.e)/16)}
    s_mov_b32 s44, 0x7fff7fff
    s_mov_b32 s45, 0
    """)
    def xdma():
        L=[]
        for i in range(7):
            p=f"s_add_u32 m0, s42, {4096*(i//4)}\ns_nop 0\n" if i%4==0 else ""
            L.append(p+f"global_load_lds_dwordx4 v{vX0+i//4}, s[34:35] offset:{1024*(i%4)}")
        L.append("s_add_u32 s34, s34, 28672\ns_addc_u32 s35, s35, 0\ns_xor_b32 s42, s42, 0x18000")
        return L
    for t in xdma(): g(t)
    for i in range(36,56): g(f"v_mov_b32 v{i}, 0")
    PD_A=""
    if PD:
        PD_A=f"""s_add_u32 s36, s32, 10240
        s_addc_u32 s37, s33, 0
        global_store_dwordx2 v{vS1}, v[118:119], s[36:37]
        global_store_short v{vS2}, v118, s[36:37]"""
        g(f"""v_mov_b32 v118, -1
        v_mov_b32 v119, -1
        s_cmp_eq_u32 s40, 0
        s_cbranch_scc1 AL_LOOP
        s_cmp_lg_u32 s16, 0
        s_cbranch_scc1 AL_LOOP
        global_store_dwordx2 v{vS1}, v[118:119], s[32:33]
        global_store_short v{vS2}, v118, s[32:33]""")
    g("AL_LOOP:")
    if prof: g(f"{TM} s[50:51]")
    poll_mem(g,"AL",PL,vP0,vP1)
    if prof: g(f"{TM} s[52:53]")
    for kk in range(7): g(f"ds_read_b128 {v(MEM+4*kk,4)}, v{vL} offset:{1024*kk}")
    def keys(tp): return [f"ds_read_b128 {v(KEY,4)}, v{vXR} offset:{2048*tp}", f"ds_read_b128 {v(KEY+4,4)}, v{vXR} offset:{2048*tp+1024}", f"ds_read_b128 {v(KEY+8,4)}, v{vK} offset:{512*tp}"]
    keys6=[f"ds_read_b64 {v(KEY6,2)}, v{vXR2}", f"ds_read_b64 {v(KEY6+2,2)}, v{vXR2} offset:512", f"ds_read_b64 {v(KEY6+4,2)}, v{vK2}"]
    sm=lambda t,kk: f"v_smfmac_f32_16x16x64_bf16 {v(acc[t],4)}, {v(MEM+4*kk,4)}, {wreg_a(t*7+kk)}, v{IDX}"
    cv=lambda d,s_: [f"v_cvt_pk_bf16_f32 v{d}, v{s_}, v{s_+1}", f"v_cvt_pk_bf16_f32 v{d+1}, v{s_+2}, v{s_+3}"]
    mt=lambda t,tb: f"v_mfma_f32_16x16x16_bf16 {v(acc[t],4)}, {v(tb,2)}, {v(I2,2)}, 0"
    ms=lambda i,first: f"v_mfma_f32_16x16x32_bf16 {v(S+4*i,4)}, {v(KEY+4*i,4)}, {v(TTb,4)}, {'0' if first else v(S+4*i,4)}"
    ms6=lambda i: f"v_mfma_f32_16x16x16_bf16 {v(S+4*i,4)}, {v(KEY6+2*i,2)}, {v(TTb+4,2)}, {v(S+4*i,4)}"
    zero=lambda t: [f"v_mov_b32 v{acc[t]+i}, 0" for i in range(4)]
    M=[]; side={}
    def add(m, *sd):
        M.append(m); side.setdefault(len(M)-1,[]).extend(sd)
    kr=keys(0)+keys6; z=zero(4)+zero(5); nk=0
    for kk in range(7):
        side.setdefault(len(M)-1,[]).append(f"s_waitcnt lgkmcnt({6-kk+nk})")
        for t in (0,1,6):
            sd=[]
            if kr and len(M)%2==0: sd.append(kr.pop(0)); nk+=1
            elif z: sd.append(z.pop(0))
            add(sm(t,kk),*sd)
    assert not kr and not z
    add(sm(2,0),*cv(Tb,acc[0])); add(sm(3,0),*cv(Tb+2,acc[1])); add(sm(2,1),*cv(Tb+4,acc[6]))
    add(mt(0,Tb)); add(mt(1,Tb+2)); add(mt(6,Tb+4))
    add(sm(3,1),*cv(TTb,acc[0])); add(sm(2,2),*cv(TTb+2,acc[1])); add(sm(3,2),*cv(TTb+4,acc[6]))
    add(sm(2,3),"s_waitcnt lgkmcnt(0)")
    k1=keys(1)
    add(ms(0,1)); add(ms(1,1),k1[0]); add(ms(2,1),k1[1]); add(sm(3,3),k1[2])
    add(ms6(0)); add(ms6(1)); add(ms6(2))
    for kk in range(4,7): add(sm(2,kk)); add(sm(3,kk))
    add(sm(4,0)); add(sm(4,1),*cv(Tb,acc[2])); add(sm(4,2),*cv(Tb+2,acc[3]))
    add(mt(2,Tb)); add(mt(3,Tb+2)); add(sm(4,3)); add(sm(4,4),*cv(TTb,acc[2])); add(sm(4,5),*cv(TTb+2,acc[3]))
    add(sm(4,6),"s_waitcnt lgkmcnt(0)")
    k2=keys(2)
    add(sm(5,0)); add(ms(0,0)); add(ms(1,0),k2[0],*cv(Tb,acc[4])); add(ms(2,0),k2[1]); add(mt(4,Tb),k2[2])
    add(sm(5,1)); add(sm(5,2)); add(sm(5,3),*cv(TTb,acc[4]))
    add(sm(5,4),f"v_xor_b32 v{vXR}, 0x18000, v{vXR}",f"v_xor_b32 v{vXR2}, 0x18000, v{vXR2}"); add(sm(5,5))
    add(sm(5,6),*cv(Tb+2,acc[5])); add(mt(5,Tb+2),*(cv(TTb+2,acc[5])+["s_waitcnt lgkmcnt(0)"]))
    add(ms(0,0)); add(ms(1,0)); add(ms(2,0))
    weave(g,M,side)
    for i in range(3): g(f"ds_write_b128 v{vPW}, {v(S+4*i,4)} offset:{1024*i}")
    g(f"""
    s_waitcnt lgkmcnt(0)
    s_barrier
    s_cmp_lg_u32 s16, 0
    s_cbranch_scc1 AL_SKIP""")
    if prof: g(f"{TM} s[54:55]")
    for w in range(4):
        g(f"ds_read_b128 {v(36+4*w,4)}, v{vPR1} offset:{3072*w}")
        if w&1: g(f"ds_read2st64_b32 {v(51+w,2)}, v{vPR2} offset0:{12*(w-1)} offset1:{12*w}")
    g(f"""
    s_waitcnt lgkmcnt(4)
    v_pk_add_f32 v[36:37], v[36:37], v[40:41]
    v_pk_add_f32 v[38:39], v[38:39], v[42:43]
    s_waitcnt lgkmcnt(0)
    v_pk_add_f32 v[44:45], v[44:45], v[48:49]
    v_pk_add_f32 v[46:47], v[46:47], v[50:51]
    v_pk_add_f32 v[52:53], v[52:53], v[54:55]
    v_pk_add_f32 v[36:37], v[36:37], v[44:45]
    v_pk_add_f32 v[38:39], v[38:39], v[46:47]
    v_add_f32 v40, v52, v53
    v_max3_f32 v41, v36, v37, v38
    v_max3_f32 v41, v41, v39, v40
    v_max_f32_dpp v41, v41, v41 quad_perm:[1,0,3,2] row_mask:0xf bank_mask:0xf
    v_mov_b32 v42, v41
    v_permlane16_swap_b32 v41, v42
    v_max_f32 v41, v41, v42
    v_mov_b32 v42, v41
    v_permlane32_swap_b32 v41, v42
    v_max_f32 v41, v41, v42
    v_mul_f32 v41, s43, v41
    v_fma_f32 v36, v36, s43, -v41
    v_fma_f32 v37, v37, s43, -v41
    v_exp_f32 v36, v36
    v_fma_f32 v38, v38, s43, -v41
    v_exp_f32 v37, v37
    v_fma_f32 v39, v39, s43, -v41
    v_exp_f32 v38, v38
    v_fma_f32 v40, v40, s43, -v41
    v_exp_f32 v39, v39
    v_add_f32 v41, v36, v37
    v_exp_f32 v40, v40
    v_add_f32 v41, v41, v38
    v_add_f32 v42, v39, v40
    v_add_f32 v41, v41, v42
    v_add_f32_dpp v41, v41, v41 quad_perm:[1,0,3,2] row_mask:0xf bank_mask:0xf
    v_mov_b32 v42, v41
    v_permlane16_swap_b32 v41, v42
    v_add_f32 v41, v41, v42
    v_mov_b32 v42, v41
    v_permlane32_swap_b32 v41, v42
    v_add_f32 v41, v41, v42
    v_rcp_f32 v41, v41
    v_mul_f32 v36, v36, v41
    v_mul_f32 v37, v37, v41
    v_mul_f32 v38, v38, v41
    v_mul_f32 v39, v39, v41
    v_mul_f32 v40, v40, v41
    v_cvt_pk_bf16_f32 v42, v36, v37
    v_cvt_pk_bf16_f32 v43, v38, v39
    v_cvt_pk_bf16_f32 v44, v40, v40
    v_and_b32 v42, s44, v42
    v_and_b32 v43, s44, v43
    v_and_b32 v44, s44, v44
    s_cmp_eq_u32 s40, 0
    s_cbranch_scc1 AL_SLOW
    global_store_dwordx2 v{vS1}, v[42:43], s[32:33]
    global_store_short v{vS2}, v44, s[32:33]
    {PD_A}
    s_branch AL_SKIP
    AL_SLOW:
    global_store_dwordx2 v{vS1}, v[42:43], s[32:33] sc1
    global_store_short v{vS2}, v44, s[32:33] sc1
    AL_SKIP:
    """)
    if prof:
        g(f"""{TM} s[56:57]
        s_cmp_lg_u32 s16, 0
        s_cbranch_scc1 AL_NP
        s_waitcnt lgkmcnt(0)
        v_mov_b32 v36, s50
        v_mov_b32 v37, s52
        v_mov_b32 v38, s54
        v_mov_b32 v39, s56
        s_mul_i32 s20, s17, 1024
        s_lshl_b32 s21, s45, 4
        s_add_u32 s20, s20, s21
        s_add_u32 s20, s20, {WSEND}
        v_mov_b32 v40, s20
        global_store_dwordx4 v40, v[36:39], s[4:5]
        AL_NP:""")
    for t in xdma(): g(t)
    for i in range(36,56): g(f"v_mov_b32 v{i}, 0")
    if SLA: g(f"s_cmp_eq_u32 s16, 0\ns_cbranch_scc1 AL_S0\ns_sleep {SLA[1]}\nAL_S0:\ns_sleep {SLA[0]}")
    g(f"""
    s_add_u32 s30, s30, 7168
    s_addc_u32 s31, s31, 0
    s_add_u32 s32, s32, 10240
    s_addc_u32 s33, s33, 0
    s_add_u32 s45, s45, 1
    s_cmp_lt_u32 s45, 63
    s_cbranch_scc1 AL_LOOP
    AL_EXIT:
    s_waitcnt vmcnt(0)
    s_endpgm
    """)

def beta(g, prof=False, flags=False, gamma=False):
    T='GA' if gamma else 'BE'
    MEM=8; WT=52; Ub=68; US=84; PO=92; D=104; PL=40; VO=8
    vP0,vP1,vL=0,1,2; vWL,vVR,vD0,vD1,vU=3,4,5,6,7; IDX=113
    vRW,vRR,vM1,vM2,vPx,vPm=120,121,122,123,124,125
    acc=lambda hh,ct: 36+8*(hh&1)+4*ct
    g(f"""
    {'s_cmp_ge_u32 s17, 14' if gamma else 's_sub_u32 s17, s17, 16'}
    {'s_cselect_b32 s45, 1, 0' if gamma else ''}
    {'s_cselect_b32 s20, 14, 0' if gamma else ''}
    {'s_sub_u32 s17, s17, s20' if gamma else ''}
    s_mul_i32 s20, s17, 458752
    s_mul_i32 s21, s16, 114688
    s_add_u32 s20, s20, s21
    s_add_u32 s20, s20, {WB}
    s_add_u32 s36, s4, s20
    s_addc_u32 s37, s5, 0
    v_and_b32 v118, 63, v0
    v_lshlrev_b32 v118, 4, v118
    s_lshl_b32 s42, s16, 14
    s_add_u32 s42, s42, 0x18000
    """)
    for tl in range(8):
        g(f"v_add_u32 v119, {tl*14336}, v118")
        for kk in range(6):
            if kk and kk%2==0: g("v_add_u32 v119, 4096, v119")
            for h2 in range(2): g(f"global_load_dwordx4 {sub(wreg_b(tl*6+kk),h2)}, v119, s[36:37] offset:{(kk%2)*2048+h2*1024}")
        g(f"v_add_u32 v119, 4096, v119\ns_add_u32 m0, s42, {tl*2048}\ns_nop 0")
        for h2 in range(2): g(f"global_load_lds_dwordx4 v119, s[36:37] offset:{h2*1024}")
    if not gamma: team_sync(g,"BE")
    common_setup(g)
    g(f"""
    v_add_u32 v{vWL}, s42, v2
    s_lshl_b32 s42, s16, 13
    s_add_u32 s42, s42, 0x8000
    v_add_u32 v{vVR}, s42, v2
    s_lshl_b32 s20, s16, 13
    v_add_u32 v{vD0}, s20, v2
    v_add_u32 v{vD1}, 4096, v{vD0}
    s_lshl_b32 s20, s17, 15
    s_add_u32 s20, s20, {VX}
    s_add_u32 s34, s4, s20
    s_addc_u32 s35, s5, 0
    v_and_b32 v98, 1, v119
    v_lshrrev_b32 v99, 1, v119
    v_lshlrev_b32 v100, 5, v98
    v_lshl_add_u32 v100, v99, 4, v100
    v_add_u32 v100, v100, v117
    v_lshlrev_b32 v100, 4, v100
    s_lshl_b32 s20, s16, 11
    v_add_u32 v{vU}, s20, v100
    s_lshl_b32 s20, s17, 13
    s_add_u32 s20, s20, {UB}
    s_add_u32 s46, s4, s20
    s_addc_u32 s47, s5, 0
    s_lshl_b32 s20, s16, 10
    s_add_u32 s20, s20, 0x2000
    v_lshlrev_b32 v100, 2, v118
    v_add_u32 v{vRW}, s20, v100
    s_lshl_b32 s20, s16, 8
    s_add_u32 s20, s20, 0x2000
    v_and_b32 v100, 31, v118
    v_lshlrev_b32 v101, 3, v100
    v_add_u32 v{vRR}, s20, v101
    v_bfe_u32 v101, v118, 4, 1
    v_bfe_u32 v102, v118, 3, 1
    v_lshlrev_b32 v102, 2, v102
    v_add_u32 v102, s16, v102
    v_lshlrev_b32 v102, 4, v102
    v_lshl_add_u32 v102, v101, 8, v102
    s_lshl_b32 s20, s17, 9
    v_add_u32 v102, s20, v102
    v_bfe_u32 v103, v118, 2, 1
    v_lshl_add_u32 v104, v103, 7, v102
    v_and_b32 v105, 3, v118
    v_lshl_add_u32 v{vM1}, v105, 2, v104
    v_add_u32 v{vM1}, 7168, v{vM1}
    v_add_u32 v{vM2}, 7168, v{vM1}
    v_mov_b32 v126, -1
    s_add_u32 s48, s4, {MEM2}
    s_addc_u32 s49, s5, 0
    s_lshl_b32 s20, s16, 11
    v_add_u32 v{vPx}, s20, v2
    v_lshlrev_b32 v102, 8, v99
    v_lshl_add_u32 v102, v117, 4, v102
    s_lshl_b32 s20, s16, 9
    s_add_u32 s20, s20, 8192
    v_add_u32 v{vPm}, s20, v102
    s_mov_b32 s44, 0x80008000
    {'' if gamma else 's_mov_b32 s45, 0'}
    """)
    def vdma():
        L=[]
        for hf in range(2):
            for i in range(4):
                p=f"s_add_u32 m0, s42, {4096*hf}\ns_nop 0\n" if i==0 else ""
                L.append(p+f"global_load_lds_dwordx4 v{vD0+hf}, s[34:35] offset:{1024*i}")
        L.append("s_add_u32 s34, s34, 458752\ns_addc_u32 s35, s35, 0\ns_xor_b32 s42, s42, 0x18000")
        return L
    if gamma:
        g(f"""s_lshl_b32 s20, s17, 4
        s_lshl_b32 s21, s16, 2
        s_add_u32 s20, s20, s21
        s_lshl_b32 s21, s45, 8
        s_add_u32 s20, s20, s21
        s_add_u32 s20, s20, {F_STEP-512}
        v_mov_b32 v114, s20
        s_mul_i32 s20, s45, 7168
        s_add_u32 s30, s48, s20
        s_addc_u32 s31, s49, 0
        s_mul_i32 s20, s45, 114688
        s_add_u32 s46, s46, s20
        s_addc_u32 s47, s47, 0""")
    if flags and not gamma:
        g(f"""v_min_u32 v112, 7, v118
        v_lshlrev_b32 v112, 8, v112
        v_add_u32 v112, {F_VX}, v112
        s_mov_b32 s41, 0
        BE_V0:
        global_load_dword v115, v112, s[4:5] sc1
        s_add_u32 s41, s41, 1
        s_cmp_gt_u32 s41, {SPIN}
        s_cbranch_scc1 BE_EXIT
        s_waitcnt vmcnt(0)
        v_cmp_gt_u32 vcc, {NVX}, v115
        s_mov_b32 s59, vcc_lo
        s_bitcmp1_b32 s59, 0
        s_cbranch_scc1 BE_V0
        """)
    if not gamma:
        for t in vdma(): g(t)
    for i in range(36,52): g(f"v_mov_b32 v{i}, 0")
    if PD and not gamma: g(f"s_cmp_eq_u32 s40, 0\ns_cbranch_scc1 BE_LOOP\ns_mov_b32 exec_hi, 0\nglobal_store_dword v{vM1}, v126, s[30:31]\ns_mov_b32 exec_hi, -1")
    g(f"{T}_LOOP:")
    if prof: g(f"{TM} s[50:51]")
    PLr=104
    if gamma:
        poll_mem(g,T,PLr,vP0,vP1)
        g("s_cmp_lt_u32 s45, 2\ns_cbranch_scc1 GA_NF\nglobal_store_dword v114, v113, s[4:5] sc1\nGA_NF:\nv_add_u32 v114, 512, v114")
    else: poll_mem(g,T,PO,vP0,vP1,US if PIPE else None)
    if prof: g(f"{TM} s[52:53]")
    for kk in range(7): g(f"ds_read_b128 {v(MEM+4*kk,4)}, v{vL} offset:{1024*kk}")
    if flags and not gamma: g(f"s_cmp_eq_u32 s59, 0\ns_cbranch_scc1 BE_V1\nglobal_load_dword v115, v112, s[4:5] sc1\nBE_V1:")
    def wl(hh): return [f"ds_read_b128 {v(WT+8*ct+4*h2,4)}, v{vWL} offset:{(hh*2+ct)*2048+h2*1024}" for ct in range(2) for h2 in range(2)]
    def sm(hh,ct,kk):
        w=wreg_b((hh*2+ct)*6+kk) if kk<6 else v(WT+8*ct,8)
        return f"v_smfmac_f32_16x16x64_bf16 {v(acc(hh,ct),4)}, {v(MEM+4*kk,4)}, {w}, v{IDX}"
    def post(hh):
        L=[]
        if not gamma:
          for ct in range(2):
            A=acc(hh,ct); d=Ub+8*ct+2*hh
            L+=[f"v_cvt_pk_bf16_f32 v{d}, v{A}, v{A+1}", f"v_cvt_pk_bf16_f32 v{d+1}, v{A+2}, v{A+3}"]
        A=acc(hh,0);B=acc(hh,1)
        if not gamma: return L+[f"v_mov_b32 v{A+i}, 0" for i in range(8)]
        L+=[f"v_permlane32_swap_b32 v{A+i}, v{B+i}" for i in range(4)]
        L+=[f"v_pk_add_f32 {v(A,2)}, {v(A,2)}, {v(B,2)}", f"v_pk_add_f32 {v(A+2,2)}, {v(A+2,2)}, {v(B+2,2)}"]
        d=US+4*(hh>>1)+2*(hh&1)
        L+=[f"v_cvt_pk_bf16_f32 v{d}, v{A}, v{A+1}", f"v_cvt_pk_bf16_f32 v{d+1}, v{A+2}, v{A+3}"]
        if hh&1: L.append(f"global_store_dwordx4 v{vU}, {v(US+4*(hh>>1),4)}, s[46:47] offset:{1024*(hh>>1)} sc1")
        L+=[f"v_mov_b32 v{A+i}, 0" for i in range(8)]
        return L
    vd=vdma()
    for hh in range(4):
        M=[];side={}
        for kk in range(7):
            if hh==0: side.setdefault(len(M)-1,[]).append(f"s_waitcnt lgkmcnt({6-kk+4 if kk<6 else 0})")
            elif kk==6: side.setdefault(len(M)-1,[]).append("s_waitcnt lgkmcnt(0)")
            M+=[sm(hh,0,kk),sm(hh,1,kk)]
        side.setdefault(-1,[])[:0]=wl(hh)
        if hh==0:
          if not gamma:
            g("s_cmp_ge_u32 s45, 61\ns_cselect_b32 s58, 0, 458752")
            vd[-1]=vd[-1].replace("458752","s58")
            for i,t in enumerate(vd):
                if 'load' in t and os.environ.get('NOVD'): continue
                side.setdefault(2+i,[]).append(t)
        else:
            P=post(hh-1)
            for i,t in enumerate(P): side.setdefault(4+i//3,[]).append(t)
        weave(g,M,side)
    for t in post(3): g(t)
    if gamma:
        g(f"""
        s_add_u32 s46, s46, {2*114688}
        s_addc_u32 s47, s47, 0
        s_add_u32 s30, s30, {2*7168}
        s_addc_u32 s31, s31, 0
        s_add_u32 s45, s45, 2
        s_barrier
        s_cmp_lt_u32 s45, 64
        s_cbranch_scc1 GA_LOOP
        s_waitcnt vmcnt(0)
        global_store_dword v114, v113, s[4:5] sc1
        GA_EXIT:
        s_waitcnt vmcnt(0)
        s_endpgm
        """)
        return
    for p in range(2):
        for ct in range(2):
            for j in range(2): g(f"ds_read_b128 {v(VO+16*p+8*ct+4*j,4)}, v{vVR} offset:{((2*p+j)*2+ct)*1024}")
    g(f"v_xor_b32 v{vVR}, 0x18000, v{vVR}")
    for i in range(8): g(f"v_mov_b32 v{D+i}, 0")
    if prof: g(f"{TM} s[54:55]")
    if SLB: g(f"s_sleep {SLB}")
    iss=lambda X: f"""global_load_dwordx4 {v(X,4)}, v{vPx}, s[32:33] sc1
    global_load_dwordx4 {v(X+4,4)}, v{vPx}, s[32:33] offset:1024 sc1
    global_load_dwordx4 {v(X+8,4)}, v{vPm}, s[32:33] sc1"""
    chk=lambda X: f"""v_or3_b32 v116, v{X}, v{X+1}, v{X+2}
    v_or3_b32 v117, v{X+3}, v{X+4}, v{X+5}
    v_or3_b32 v116, v116, v{X+6}, v{X+7}
    v_or3_b32 v117, v117, v{X+8}, v{X+9}
    v_or3_b32 v116, v116, v{X+10}, v{X+11}
    v_or_b32 v116, v116, v117
    v_and_b32 v116, s44, v116
    v_cmp_ne_u32 vcc, 0, v116"""
    def fin(X):
        if prof: g(f"{TM} s[56:57]")
        for p in range(2):
            for ct in range(2): g(f"v_smfmac_f32_16x16x64_bf16 {v(D+4*ct,4)}, {v(X+4*p,4)}, {v(VO+16*p+8*ct,8)}, v{IDX}")
        for ct in range(2): g(f"v_smfmac_f32_16x16x64_bf16 {v(D+4*ct,4)}, {v(X+8,4)}, {v(Ub+8*ct,8)}, v{IDX}")
    if PIPE:
        g(f"""
        s_mov_b32 s41, 0
        {iss(PO)}
        s_sleep {PSL}
        BE_PP:
        {iss(WT)}
        s_add_u32 s41, s41, 1
        s_cmp_gt_u32 s41, {SPIN}
        s_cbranch_scc1 BE_EXIT
        s_waitcnt vmcnt(3) lgkmcnt(0)
        {chk(PO)}
        s_cbranch_vccz BE_QA
        {iss(PO)}
        s_waitcnt vmcnt(3)
        {chk(WT)}
        s_cbranch_vccnz BE_PP""")
        fin(WT)
        g("s_branch BE_QJ\nBE_QA:")
        fin(PO)
        g("BE_QJ:")
    else:
        g(f"""
        s_mov_b32 s41, 0
        BE_PP:
        {iss(PO)}
        s_add_u32 s41, s41, 1
        s_cmp_gt_u32 s41, {SPIN}
        s_cbranch_scc1 BE_EXIT
        s_waitcnt vmcnt(0) lgkmcnt(0)
        {chk(PO)}
        s_cbranch_vccnz BE_PP""")
        fin(PO)
    for i in range(4): g(f"v_permlane32_swap_b32 v{D+i}, v{D+4+i}")
    g(f"""
    v_pk_add_f32 {v(D,2)}, {v(D,2)}, {v(D+4,2)}
    v_pk_add_f32 {v(D+2,2)}, {v(D+2,2)}, {v(D+6,2)}
    ds_write2st64_b32 v{vRW}, v{D}, v{D+1} offset0:0 offset1:1
    ds_write2st64_b32 v{vRW}, v{D+2}, v{D+3} offset0:2 offset1:3
    s_waitcnt lgkmcnt(0)
    s_barrier
    ds_read2st64_b64 v[8:11], v{vRR} offset0:0 offset1:2
    ds_read2st64_b64 v[12:15], v{vRR} offset0:4 offset1:6
    s_mov_b32 exec_hi, 0
    s_waitcnt lgkmcnt(1)
    v_pk_add_f32 v[8:9], v[8:9], v[10:11]
    s_waitcnt lgkmcnt(0)
    v_pk_add_f32 v[12:13], v[12:13], v[14:15]
    v_pk_add_f32 v[8:9], v[8:9], v[12:13]
    v_cvt_pk_bf16_f32 v8, v8, v9
    v_min_u32 v8, -2, v8
    s_cmp_eq_u32 s40, 0
    s_cbranch_scc1 BE_SLOW
    global_store_dword v{vM1}, v8, s[30:31]
    {f"global_store_dword v{vM2}, v126, s[30:31]" if PD else ""}
    s_branch BE_PUB
    BE_SLOW:
    global_store_dword v{vM1}, v8, s[30:31] sc1
    BE_PUB:
    s_mov_b32 exec_hi, -1
    v_mov_b32 v36, 0
    v_mov_b32 v37, 0
    v_mov_b32 v38, 0
    v_mov_b32 v39, 0
    """)
    if prof:
        g(f"""s_cmp_lg_u32 s16, 0
        s_cbranch_scc1 BE_NP
        s_waitcnt lgkmcnt(0)
        v_mov_b32 v8, s50
        v_mov_b32 v9, s52
        v_mov_b32 v10, s54
        v_mov_b32 v11, s56
        s_mul_i32 s20, s17, 1024
        s_lshl_b32 s21, s45, 4
        s_add_u32 s20, s20, s21
        s_add_u32 s20, s20, {WSEND+16384}
        v_mov_b32 v12, s20
        global_store_dwordx4 v12, v[8:11], s[4:5]
        BE_NP:""")
    if flags:
        g(f"""s_cmp_eq_u32 s59, 0
        s_cbranch_scc1 BE_V3
        s_add_u32 s20, s45, 2
        s_lshr_b32 s20, s20, 3
        s_mov_b32 s41, 0
        BE_V2:
        v_cmp_gt_u32 vcc, {NVX}, v115
        s_mov_b32 s59, vcc_lo
        s_bitcmp0_b32 s59, s20
        s_cbranch_scc1 BE_V3
        global_load_dword v115, v112, s[4:5] sc1
        s_add_u32 s41, s41, 1
        s_cmp_gt_u32 s41, {SPIN}
        s_cbranch_scc1 BE_EXIT
        s_waitcnt vmcnt(0)
        s_branch BE_V2
        BE_V3:""")
    g(f"""
    s_add_u32 s30, s30, 7168
    s_addc_u32 s31, s31, 0
    s_add_u32 s32, s32, 10240
    s_addc_u32 s33, s33, 0
    s_add_u32 s45, s45, 1
    {f"s_sleep {SLC}" if SLC else ""}
    s_cmp_lt_u32 s45, 63
    s_cbranch_scc1 BE_LOOP
    BE_EXIT:
    s_waitcnt vmcnt(0)
    s_endpgm
    """)

def eta(g):
    team_sync(g,"ET")
    NI=65536//(64*PFS)
    g(f"""
    s_sub_u32 s17, s17, 30
    s_lshl_b32 s17, s17, 2
    s_add_u32 s17, s17, s16
    v_and_b32 v2, 63, v0
    s_cmp_lg_u32 s17, 0
    s_cbranch_scc1 ET_PF
    v_lshlrev_b32 v3, 4, v2
    v_add_u32 v4, 4096, v3
    s_add_u32 s30, s4, {MEMB+7168}
    s_addc_u32 s31, s5, 0
    s_add_u32 s32, s4, {MEM2+7168}
    s_addc_u32 s33, s5, 0
    s_mov_b32 s45, 1
    ET_CL:
    s_mov_b32 s41, 0
    ET_CP:""")
    for kk in range(7): g(f"global_load_dwordx4 {v(8+4*kk,4)}, v{3+kk//4}, s[30:31] offset:{1024*(kk%4)} sc1")
    g(f"""s_add_u32 s41, s41, 1
    s_cmp_gt_u32 s41, {SPIN}
    s_cbranch_scc1 ET_EXIT
    s_waitcnt vmcnt(0)
    v_max_u32 v5, v8, v9""")
    for i in range(13): g(f"v_max3_u32 v5, v5, v{10+2*i}, v{11+2*i}")
    g("v_cmp_eq_u32 vcc, -1, v5\ns_cbranch_vccz ET_CS\ns_sleep 1\ns_branch ET_CP\nET_CS:")
    for kk in range(7): g(f"global_store_dwordx4 v{3+kk//4}, {v(8+4*kk,4)}, s[32:33] offset:{1024*(kk%4)} sc1")
    g(f"""s_add_u32 s30, s30, 7168
    s_addc_u32 s31, s31, 0
    s_add_u32 s32, s32, 7168
    s_addc_u32 s33, s33, 0
    s_add_u32 s45, s45, 1
    s_cmp_lt_u32 s45, 63
    s_cbranch_scc0 ET_C2
    s_sleep {ESL}
    ET_C2:
    s_cmp_lt_u32 s45, 64
    s_cbranch_scc1 ET_CL
    s_branch ET_EXIT
    ET_PF:
    s_sub_u32 s17, s17, 1
    s_lshl_b32 s20, s17, 16
    s_add_u32 s20, s20, {VX}
    s_add_u32 s30, s4, s20
    s_addc_u32 s31, s5, 0
    s_lshl_b32 s20, s17, 12
    s_add_u32 s20, s20, {XA}
    s_add_u32 s32, s4, s20
    s_addc_u32 s33, s5, 0
    v_mul_u32_u24 v3, {PFS}, v2
    v_lshlrev_b32 v4, 6, v2
    s_mov_b32 s45, 0
    ET_PL:
    s_and_b32 s20, s45, 7
    s_cmp_lg_u32 s20, 0
    s_cbranch_scc1 ET_P1
    s_lshl_b32 s24, s45, 5
    s_add_u32 s24, s24, {F_VX}""")
    wait_flag(g,24,NVX,"EV","ET_EXIT",sleep=4)
    g(f"""ET_P1:
    s_cmp_lt_u32 s45, {PFD+1}
    s_cbranch_scc1 ET_P2
    s_sub_u32 s24, s45, {PFD}
    s_mul_i32 s24, s24, 7168
    s_add_u32 s24, s24, {MEMB}""")
    wait_flag(g,24,None,"EM","ET_EXIT",sleep=8)
    g("ET_P2:\nglobal_load_dword v31, v4, s[32:33]\nv_mov_b32 v5, v3")
    for i in range(0 if not os.environ.get('PF') else NI): g(f"global_load_dword v{32+i}, v5, s[30:31]\nv_add_u32 v5, {64*PFS}, v5")
    g(f"""s_add_u32 s30, s30, 458752
    s_addc_u32 s31, s31, 0
    s_add_u32 s32, s32, 28672
    s_addc_u32 s33, s33, 0
    s_add_u32 s45, s45, 1
    s_cmp_lt_u32 s45, 63
    s_cbranch_scc1 ET_PL
    ET_EXIT:
    s_waitcnt vmcnt(0)
    s_endpgm""")

def claim(g, addr_off, dst, tag):
    g(f"""
    s_barrier
    s_cmp_lg_u32 s16, 0
    s_cbranch_scc1 {tag}_C1
    v_mov_b32 v1, {addr_off}
    v_mov_b32 v2, 1
    s_mov_b64 exec, 1
    global_atomic_add v3, v1, v2, s[4:5] sc0 sc1
    v_mov_b32 v1, 0x27F00
    s_waitcnt vmcnt(0)
    ds_write_b32 v1, v3
    s_mov_b64 exec, -1
    s_waitcnt lgkmcnt(0)
    {tag}_C1:
    s_barrier
    v_mov_b32 v1, 0x27F00
    ds_read_b32 v2, v1
    s_waitcnt lgkmcnt(0)
    v_readfirstlane_b32 s{dst}, v2
    """)

def team_entry(g, prof=False, **kw):
    g(f"""
    s_add_u32 s20, s19, 1
    v_mov_b32 v2, s20
    s_lshl_b32 s20, s17, 2
    s_add_u32 s20, s20, {F_XCC}
    v_mov_b32 v1, s20
    global_store_dword v1, v2, s[4:5] sc1
    s_cmp_ge_u32 s17, 30
    s_cbranch_scc1 ETA
    s_cmp_ge_u32 s17, 16
    s_cbranch_scc1 BETA
    """)
    alpha(g,prof)
    g("BETA:")
    beta(g,prof,**kw)
    g("ETA:")
    eta(g)

def team_dbg(prof=True, xsel=0, spread=False):
    g=G()
    g(f"""s_cmp_ge_u32 s2, 256
    s_cbranch_scc1 team_END
    s_load_dwordx2 s[4:5], s[0:1], {K_WS}
    s_load_dwordx2 s[8:9], s[0:1], {K_BX}
    s_getreg_b32 s19, hwreg(HW_REG_XCC_ID)
    s_and_b32 s19, s19, 15
    v_lshrrev_b32 v1, 6, v0
    s_nop 0
    v_readfirstlane_b32 s16, v1
    s_waitcnt lgkmcnt(0)""")
    if not spread: g(f"s_cmp_lg_u32 s19, {xsel}\ns_cbranch_scc1 team_END")
    claim(g, F_ROLE, 17, "TD")
    g("s_cmp_ge_u32 s17, 30\ns_cbranch_scc1 team_END")
    team_entry(g,prof)
    g("team_END:")
    return ("team_kernel", g.text(), 512, 256, 256, 256, 160*1024)
```

```python
import re
RX=re.compile(r'\b([vas])(\d+)\b|\b([vas])\[(\d+):(\d+)\]|\b(vcc|exec|m0)\b')
TRANS=("v_exp_","v_log_","v_rcp_","v_rsq_","v_sqrt_","v_sin_","v_cos_")
def regs(t):
    o=set()
    for m in RX.finditer(t):
        if m.group(1): o.add((m.group(1),int(m.group(2))))
        elif m.group(3): o|={(m.group(3),i) for i in range(int(m.group(4)),int(m.group(5))+1)}
        else: o.add((m.group(6),0))
    return o
class I:
    def __init__(s, ln):
        s.ln=ln; t=ln.split(";")[0].strip(); s.label=t[:-1] if t.endswith(":") else None
        s.op=t.split()[0] if t and not s.label else ""
        rest=t[len(s.op):].strip() if s.op else ""
        ops=[x.strip() for x in re.split(r',(?![^\[]*\])', rest)] if rest else []
        op=s.op; s.w=set(); s.r=set(); s.kind="other"; s.passes=0; s.A=set(); s.C=set(); s.data=set(); s.states=1
        R=[regs(x) for x in ops]
        U=lambda l: set().union(*l) if l else set()
        if op.startswith("v_mfma") or op.startswith("v_smfmac"):
            s.kind="mfma"; s.passes=8 if "32x32" in op else 4
            s.w=R[0]
            if op.startswith("v_smfmac"): s.A=R[1]|R[2]|R[3]; s.C=R[0]
            else: s.A=R[1]|R[2]; s.C=R[3]
            s.r=s.A|s.C
        elif op.startswith("v_"):
            s.kind="valu"
            if op.startswith("v_swap") or "permlane" in op: s.w=U(R[:2]); s.r=U(R)
            elif "_co_" in op: s.w=R[0]|R[1]; s.r=U(R[2:])
            else:
                s.w=R[0]; s.r=U(R[1:])
                if op.startswith(("v_fmac","v_mac","v_pk_fmac")) or "dpp" in t or "row_" in t or "quad_perm" in t or "d16" in op or op.startswith("v_writelane"): s.r|=R[0]
                if op.startswith("v_cndmask") and len(ops)==3: s.r.add(("vcc",0))
            s.dpp=("row_" in t or "quad_perm" in t or "_dpp" in op)
        elif op.startswith(("global_","buffer_","flat_")):
            s.kind="vmem"
            if "lds" in t.split() or "_lds_" in op: s.r=U(R); s.ldsdma=True
            elif "store" in op:
                s.r=U(R); d=R[1] if op.startswith("global") else R[0]
                if "x3" in op or "x4" in op: s.data=d
            elif "atomic" in op:
                if " sc0" in t: s.w=R[0]; s.r=U(R[1:])
                else: s.r=U(R)
            elif op in("buffer_inv","buffer_wbl2"): pass
            else:
                s.w=R[0]; s.r=U(R[1:])
        elif op.startswith("ds_"):
            s.kind="ds"
            if "read" in op or "rtn" in op or "permute" in op or "swizzle" in op: s.w=R[0]; s.r=U(R[1:])
            else: s.r=U(R)
        elif op.startswith("s_"):
            s.kind="salu"
            if op=="s_nop": s.states=int(ops[0],0)+1
            elif op.startswith(("s_cmp","s_bitcmp","s_cbranch","s_branch","s_waitcnt","s_barrier","s_endpgm","s_sleep","s_setprio")): s.r=U(R)
            else:
                if R: s.w=R[0]; s.r=U(R[1:])
        if s.label is not None or not op: s.states=0
        s.target=ops[0] if op.startswith(("s_cbranch","s_branch")) else None
def isv(x): return {y for y in x if y[0] in "va" and len(y[0])==1}
def iss(x): return {y for y in x if y[0]=="s" or y[0]=="vcc"}
def need(p, c):
    n=0
    if p.kind=="valu":
        pv=isv(p.w); ps=iss(p.w)
        if c.kind=="mfma" and pv&c.r: n=max(n,2)
        if c.kind=="valu":
            if pv&c.r:
                if c.dpp or "permlane" in c.op: n=max(n,2)
                if c.op.startswith(("v_readfirstlane","v_readlane")): n=max(n,1)
                if p.op.startswith(TRANS): n=max(n,1)
            if ps&c.r: n=max(n,4 if c.op.startswith(("v_readlane","v_writelane")) else 2)
        if c.kind=="vmem" and ps&c.r: n=max(n,5)
    elif p.kind=="mfma":
        big=8 if p.passes==4 else 12
        if c.kind=="mfma":
            if p.w&c.A: n=max(n,big)
            if p.w&c.C and not (p.w==c.C and p.passes==c.passes): n=max(n,big-2)
            if p.w&c.w and not (p.w&c.C): n=max(n,0)
        elif c.kind in("valu","vmem","ds"):
            if p.w&(c.r|c.w): n=max(n,big)
            if c.kind=="valu" and p.C&c.w: n=max(n,3 if p.passes==4 else 7)
    elif p.kind=="vmem":
        if p.data&c.w: n=max(n,2 if c.kind=="valu" else 1)
    elif p.kind=="salu":
        if ("m0",0) in p.w and getattr(c,"ldsdma",False): n=max(n,1)
    return n
def fix(text, verbose=False):
    ins=[I(l) for l in text.rstrip("\n").split("\n")]
    total=0
    for rounds in range(3):
        labs={x.label:i for i,x in enumerate(ins) if x.label}
        src={}
        for i,x in enumerate(ins):
            if x.target: src.setdefault(x.target,[]).append(i)
        out=[]; changed=0
        add={}
        def back(i, dist, c, depth):
            best=0; j=i-1; nm=0; d0=0
            while j>=0 and dist<20:
                dist+=add.get(j+1,0) if j+1!=cidx else 0
                p=ins[j]
                if p.label:
                    if depth<2:
                        for b in src.get(p.label,[]): best=max(best,back(b+1,dist,c,depth+1) if True else 0)
                elif p.op in("s_branch","s_endpgm") and j!=i-1 or (p.op in("s_endpgm",)):
                    break
                elif p.op=="s_branch" and depth==0: break
                else:
                    de=dist
                    if p.kind=="mfma" and nm and depth==0: de=max(dist,4*nm+d0)
                    best=max(best,need(p,c)-de)
                    if p.kind=="mfma":
                        if nm==0: d0=dist
                        nm+=1
                    dist+=p.states
                j-=1
            return best
        for cidx,c in enumerate(ins):
            if c.kind in("valu","mfma","vmem","ds"):
                n=back(cidx,0,c,0)
                if n>0: add[cidx]=n
        if not add: break
        for i,x in enumerate(ins):
            if i in add:
                n=add[i]; total+=n
                while n>0:
                    k=min(n,16); out.append(I(f" s_nop {k-1}")); n-=k
            out.append(x)
        ins=out
    if verbose: print("hazard nops inserted:", total)
    return "\n".join(x.ln for x in ins)+"\n"
```

```python
from gbase import *
import math
import os
SPIN=2000000
from ggemm import VXN
from gpost import wait_flag
PFD=int(os.environ.get('PFD','4'))
ESL=int(os.environ.get('ESL','20'))
NVX=224
TRIM=int(os.environ.get('TRIM','1'))
TM=os.environ.get('TM','s_memtime')
PD=int(os.environ.get('PD','0'))
SLC=int(os.environ.get('SLC','4'))
PSL=int(os.environ.get('PSL','2'))
PIPE=int(os.environ.get('PIPE','0'))
PFS=int(os.environ.get('PFS','128'))
SLA=eval(os.environ.get('SLA','(11,6)'))
SLB=eval(os.environ.get('SLB','None'))
def wreg_a(b): return r(256+8*b,8) if b<32 else r(120+8*(b-32),8)
def wreg_b(b): return r(256+8*b,8) if b<32 else r(128+8*(b-32),8)
def sub(reg8, half):
    import re
    m=re.match(r'([va])\[(\d+):',reg8); b=int(m.group(2))+4*half
    return f"{m.group(1)}[{b}:{b+3}]"

def team_sync(g, tag):
    g(f"""
    s_add_u32 s36, s4, {F_XCC}
    s_addc_u32 s37, s5, 0
    v_and_b32 v98, 63, v0
    v_min_u32 v98, 31, v98
    v_lshlrev_b32 v98, 2, v98
    s_mov_b32 s41, 0
    {tag}_TS:
    global_load_dword v99, v98, s[36:37] sc1
    s_add_u32 s41, s41, 1
    s_cmp_gt_u32 s41, {SPIN}
    s_cbranch_scc1 {tag}_EXIT
    s_waitcnt vmcnt(0)
    v_cmp_eq_u32 vcc, 0, v99
    s_cbranch_vccnz {tag}_TS
    s_add_u32 s41, s19, 1
    v_cmp_ne_u32 vcc, s41, v99
    s_mov_b32 s40, 1
    s_cbranch_vccz {tag}_TS2
    s_mov_b32 s40, 0
    {tag}_TS2:
    """)

def poll_mem(g, tag, P, vP0, vP1, P2=None, mid=()):
    iss=lambda X: f"global_load_dwordx4 {v(X,4)}, v{vP0}, s[30:31] sc1\nglobal_load_dwordx4 {v(X+4,4)}, v{vP1}, s[30:31] sc1"
    chk=lambda X: f"""v_max3_u32 v116, v{X}, v{X+1}, v{X+2}
    v_max3_u32 v117, v{X+3}, v{X+4}, v{X+5}
    v_max3_u32 v116, v116, v{X+6}, v{X+7}
    v_max_u32 v116, v116, v117
    v_cmp_eq_u32 vcc, -1, v116"""
    wr=lambda X: f"ds_write_b128 v{vP0}, {v(X,4)}\nds_write_b128 v{vP1}, {v(X+4,4)}"
    if P2 is None:
        g(f"""
        s_mov_b32 s41, 0
        {tag}_PM:
        {iss(P)}
        s_add_u32 s41, s41, 1
        s_cmp_gt_u32 s41, {SPIN}
        s_cbranch_scc1 {tag}_EXIT
        s_waitcnt vmcnt(0)
        {chk(P)}
        s_cbranch_vccnz {tag}_PM
        {wr(P)}
        """)
    else:
        g(f"""
        s_mov_b32 s41, 0
        {iss(P)}
        s_sleep {PSL}
        {tag}_PM:
        {iss(P2)}
        s_add_u32 s41, s41, 1
        s_cmp_gt_u32 s41, {SPIN}
        s_cbranch_scc1 {tag}_EXIT
        s_waitcnt vmcnt(2)
        {chk(P)}
        s_cbranch_vccz {tag}_PA
        {iss(P)}
        s_waitcnt vmcnt(2)
        {chk(P2)}
        s_cbranch_vccnz {tag}_PM
        {wr(P2)}
        s_branch {tag}_PJ
        {tag}_PA:
        {wr(P)}
        {tag}_PJ:
        """)
    for t in mid: g(t)
    g("s_waitcnt lgkmcnt(0)\ns_barrier")

def common_setup(g):
    g(f"""
    v_and_b32 v118, 63, v0
    v_lshrrev_b32 v119, 4, v118
    v_and_b32 v117, 15, v118
    s_mul_i32 s20, s16, 112
    v_add_u32 v0, s20, v118
    v_add_u32 v1, 64, v0
    v_min_u32 v1, 447, v1
    v_lshlrev_b32 v0, 4, v0
    v_lshlrev_b32 v1, 4, v1
    v_lshlrev_b32 v2, 4, v118
    v_mov_b32 v113, 0x4444
    v_mov_b32 v116, 0xeeee
    v_cmp_gt_u32 vcc, 8, v117
    v_cndmask_b32 v113, v116, v113, vcc
    s_add_u32 s30, s4, {MEMB}
    s_addc_u32 s31, s5, 0
    s_add_u32 s32, s4, {PB}
    s_addc_u32 s33, s5, 0
    """)

def alpha(g, prof=False):
    APD=int(os.environ.get('APD','0')); APS=int(os.environ.get('APS','8'))
    MEM=8; Tb=56; TTb=62; KEY=68; KEY6=80; S=86; PL=98
    acc={0:36,1:40,6:44,2:48,3:52,4:98,5:102}
    vP0,vP1,vL,vK,vK2,vX0,vX1,vX2=range(8); vXR,vXR2,vPW,vPR1,vPR2,vS1,vS2=range(106,113); IDX=113; I2=114
    g(f"""
    s_mul_i32 s20, s17, 401408
    s_mul_i32 s21, s16, 100352
    s_add_u32 s20, s20, s21
    s_add_u32 s36, s4, s20
    s_addc_u32 s37, s5, 0
    v_and_b32 v119, 63, v0
    v_lshlrev_b32 v119, 4, v119
    """)
    pk=lambda L: sum(c<<(4*i) for i,c in enumerate(L))
    g(f"""s_cmp_eq_u32 s16, 1
    s_cselect_b32 s22, {pk([2,3,0,1,4,5,6])}, {pk([0,1,2,3,4,5,6])}
    s_cmp_eq_u32 s16, 2
    s_cselect_b32 s22, {pk([4,5,0,1,2,3,6])}, s22
    s_cmp_eq_u32 s16, 3
    s_cselect_b32 s22, {pk([6,0,2,3,4,5,1])}, s22""".replace(f"s_cselect_b32 s22, {pk([2,3,0,1,4,5,6])}, {pk([0,1,2,3,4,5,6])}", f"s_mov_b32 s22, {pk([0,1,2,3,4,5,6])}\ns_cselect_b32 s22, {pk([2,3,0,1,4,5,6])}, s22"))
    for j in range(7):
        g(f"s_bfe_u32 s20, s22, {4*j|(4<<16)}\ns_lshl_b32 s20, s20, 11\nv_add_u32 v118, s20, v119")
        for t in range(7):
            if t: g("v_add_u32 v118, 14336, v118")
            for h2 in range(2): g(f"global_load_dwordx4 {sub(wreg_a(t*7+j),h2)}, v118, s[36:37] offset:{h2*1024}")
    team_sync(g,"AL")
    common_setup(g)
    g(f"""
    s_mul_i32 s20, s16, 14
    v_add_u32 v3, s20, v119
    v_lshlrev_b32 v3, 7, v3
    v_and_b32 v116, 7, v118
    v_lshl_add_u32 v3, v116, 4, v3
    s_add_u32 s20, s20, 12
    v_lshrrev_b32 v4, 1, v119
    v_add_u32 v4, s20, v4
    v_lshlrev_b32 v4, 7, v4
    v_lshl_add_u32 v4, v116, 4, v4
    v_and_b32 v98, 1, v119
    v_lshl_add_u32 v4, v98, 3, v4
    s_mul_i32 s20, s16, 7168
    v_add_u32 v5, s20, v2
    v_add_u32 v6, 4096, v5
    s_lshl_b32 s42, s16, 13
    s_add_u32 s42, s42, 0x8000
    v_add_u32 v{vXR}, s42, v2
    v_lshrrev_b32 v100, 1, v119
    v_lshl_add_u32 v100, v100, 4, v117
    v_lshlrev_b32 v100, 4, v100
    v_lshl_add_u32 v100, v98, 3, v100
    v_add_u32 v100, 6144, v100
    v_add_u32 v{vXR2}, s42, v100
    s_mul_i32 s20, s16, 3072
    s_add_u32 s20, s20, 0x4000
    v_add_u32 v{vPW}, s20, v2
    v_bfe_u32 v103, v118, 1, 3
    v_bfe_u32 v100, v118, 4, 1
    v_lshrrev_b32 v102, 5, v118
    v_and_b32 v104, 1, v118
    v_lshl_add_u32 v105, v102, 1, v104
    v_lshlrev_b32 v101, 10, v100
    v_lshl_add_u32 v101, v105, 8, v101
    v_lshl_add_u32 v101, v103, 4, v101
    v_add_u32 v{vPR1}, 0x4000, v101
    v_lshlrev_b32 v101, 8, v100
    v_lshl_add_u32 v101, v103, 4, v101
    v_lshl_add_u32 v101, v105, 2, v101
    v_add_u32 v{vPR2}, 0x4800, v101
    v_lshlrev_b32 v101, 3, v118
    s_lshl_b32 s20, s17, 9
    v_add_u32 v{vS1}, s20, v101
    v_lshlrev_b32 v101, 7, v102
    v_lshl_add_u32 v101, v103, 4, v101
    v_lshl_add_u32 v101, v100, 3, v101
    v_lshl_add_u32 v101, v104, 1, v101
    s_lshr_b32 s20, s17, 1
    s_lshl_b32 s20, s20, 8
    s_and_b32 s21, s17, 1
    s_lshl_b32 s21, s21, 2
    s_add_u32 s20, s20, s21
    s_add_u32 s20, s20, 8192
    v_add_u32 v{vS2}, s20, v101
    v_lshlrev_b32 v100, 2, v98
    v_sub_u32 v100, v117, v100
    v_mov_b32 v101, 0x3f80
    v_mov_b32 v102, 0x3f800000
    v_cmp_eq_u32 vcc, 0, v100
    v_cndmask_b32 v114, 0, v101, vcc
    v_cmp_eq_u32 vcc, 1, v100
    v_cndmask_b32 v114, v114, v102, vcc
    v_cmp_eq_u32 vcc, 2, v100
    v_cndmask_b32 v115, 0, v101, vcc
    v_cmp_eq_u32 vcc, 3, v100
    v_cndmask_b32 v115, v115, v102, vcc
    s_add_u32 s34, s4, {XA}
    s_addc_u32 s35, s5, 0
    s_mov_b32 s43, {f2u(math.log2(math.e)/16)}
    s_mov_b32 s44, 0x7fff7fff
    s_mov_b32 s45, 0
    s_lshl_b32 s20, s16, 11
    v_add_u32 v0, s20, v2
    s_add_u32 s20, s20, 1024
    s_cmp_eq_u32 s16, 3
    s_cselect_b32 s20, 0, s20
    v_add_u32 v1, s20, v2
    s_bfe_u32 s20, s22, {16|(4<<16)}
    s_lshl_b32 s20, s20, 10
    v_add_u32 v7, s20, v2
    s_bfe_u32 s20, s22, {24|(4<<16)}
    s_lshl_b32 s20, s20, 10
    v_add_u32 v66, s20, v2
    s_bfe_u32 s20, s22, {8|(4<<16)}
    s_lshl_b32 s20, s20, 10
    v_add_u32 v2, s20, v2
    s_mul_i32 s20, s17, 28672
    s_mul_i32 s21, s16, 7168
    s_add_u32 s20, s20, s21
    v_min_u32 v67, 55, v118
    v_lshlrev_b32 v67, 7, v67
    v_add_u32 v67, s20, v67
    s_add_u32 s48, s4, {VX+APD*458752}
    s_addc_u32 s49, s5, 0
    s_mov_b32 s38, s4
    s_mov_b32 s39, s5
    s_mov_b32 s59, 1
    s_mov_b32 s46, 0x00ff00ff
    s_mov_b32 s47, 0x00ff00ff
    v_mov_b64 v[56:57], 0
    v_mov_b64 v[58:59], 0
    v_mov_b64 v[60:61], 0
    v_mov_b64 v[62:63], 0
    v_mov_b64 v[64:65], 0
    v_mov_b64 v[116:117], 0
    v_mov_b64 v[118:119], 0
    """)
    def xdma():
        L=[]
        for i in range(7):
            p=f"s_add_u32 m0, s42, {4096*(i//4)}\ns_nop 0\n" if i%4==0 else ""
            L.append(p+f"global_load_lds_dwordx4 v{vX0+i//4}, s[34:35] offset:{1024*(i%4)}")
        L.append("s_add_u32 s34, s34, 28672\ns_addc_u32 s35, s35, 0\ns_xor_b32 s42, s42, 0x18000\ns_mov_b32 m0, 0x7000")
        return L
    for t in xdma(): g(t)
    for i in list(range(36,56,2))+list(range(98,106,2)): g(f"v_mov_b64 {v(i,2)}, 0")
    PD_A=""
    if 0:
        PD_A=f"""s_add_u32 s36, s32, 10240
        s_addc_u32 s37, s33, 0
        global_store_dwordx2 v{vS1}, v[66:67], s[36:37]
        global_store_short v{vS2}, v66, s[36:37]"""
        g(f"""v_mov_b32 v66, -1
        v_mov_b32 v67, -1
        s_cmp_eq_u32 s40, 0
        s_cbranch_scc1 AL_LOOP
        s_cmp_lg_u32 s16, 0
        s_cbranch_scc1 AL_LOOP
        global_store_dwordx2 v{vS1}, v[66:67], s[32:33]
        global_store_short v{vS2}, v66, s[32:33]""")
    g("AL_LOOP:")
    if prof: g(f"{TM} s[50:51]")
    AP=int(os.environ.get('AP','0'))
    iss=lambda X: f"global_load_dwordx4 {v(X,4)}, v0, s[30:31] sc1\nglobal_load_dwordx4 {v(X+4,4)}, v1, s[30:31] sc1"
    chk=lambda X: f"""v_max3_u32 v32, v{X}, v{X+1}, v{X+2}
    v_max3_u32 v33, v{X+3}, v{X+4}, v{X+5}
    v_max3_u32 v32, v32, v{X+6}, v{X+7}
    v_max_u32 v32, v32, v33
    v_cmp_eq_u32 vcc, -1, v32"""
    bound=f"s_add_u32 s41, s41, 1\ns_cmp_gt_u32 s41, {SPIN}\ns_cbranch_scc1 AL_EXIT"
    if not AP: g(f"s_mov_b32 s41, 0\nAL_PM:\n{iss(8)}\n{bound}\ns_waitcnt vmcnt(0)\n{chk(8)}\ns_cbranch_vccnz AL_PM")
    else:
        g(f"""s_mov_b32 s41, 0
        {iss(86)}
        s_sleep {AP}
        AL_PM:
        {iss(8)}
        {bound}
        s_waitcnt vmcnt(2)
        {chk(86)}
        s_cbranch_vccz AL_PB
        {iss(86)}
        s_waitcnt vmcnt(2)
        {chk(8)}
        s_cbranch_vccnz AL_PM
        s_branch AL_PJ
        AL_PB:
        v_mov_b64 v[8:9], v[86:87]
        v_mov_b64 v[10:11], v[88:89]
        v_mov_b64 v[12:13], v[90:91]
        v_mov_b64 v[14:15], v[92:93]
        AL_PJ:""")
    if prof: g(f"{TM} s[52:53]")
    def keys(tp): return [f"ds_read_b128 {v(KEY,4)}, v{vXR} offset:{2048*tp}", f"ds_read_b128 {v(KEY+4,4)}, v{vXR} offset:{2048*tp+1024}", f"ds_read_b128 {v(KEY+8,4)}, v{vK} offset:{512*tp}"]
    keys6=[f"ds_read_b64 {v(KEY6,2)}, v{vXR2}", f"ds_read_b64 {v(KEY6+2,2)}, v{vXR2} offset:512", f"ds_read_b64 {v(KEY6+4,2)}, v{vK2}"]
    sm=lambda t,kk: f"v_smfmac_f32_16x16x64_bf16 {v(acc[t],4)}, {v(MEM+4*kk,4)}, {wreg_a(t*7+kk)}, v{IDX}"
    cv=lambda d,s_: [f"v_cvt_pk_bf16_f32 v{d}, v{s_}, v{s_+1}", f"v_cvt_pk_bf16_f32 v{d+1}, v{s_+2}, v{s_+3}"]
    mt=lambda t,tb: f"v_mfma_f32_16x16x32_bf16 {v(acc[t],4)}, {v(tb,4)}, {v(I2,4)}, 0"
    ms=lambda i,first: f"v_mfma_f32_16x16x32_bf16 {v(S+4*i,4)}, {v(KEY+4*i,4)}, {v(TTb,4)}, {'0' if first else v(S+4*i,4)}"
    ms6=lambda i: f"v_mfma_f32_16x16x32_bf16 {v(S+4*i,4)}, {v(KEY6+2*i-2,4)}, {v(116,4)}, {v(S+4*i,4)}"
    zero=lambda t: [f"v_mov_b32 v{acc[t]+i}, 0" for i in range(4)]
    M=[]; side={}
    def add(m, *sd):
        M.append(m); side.setdefault(len(M)-1,[]).extend(sd)
    NB=int(os.environ.get('NB','3'))
    wr=["ds_write_b128 v0, v[8:11]","ds_write_b128 v1, v[12:15]","ds_write_b128 v0, v[8:11] offset:7168","ds_write_b128 v1, v[12:15] offset:7168"]
    side[-1]=wr[:2]
    kr=keys(0)+keys6
    W0="s_waitcnt lgkmcnt(0)"
    rd=[f"ds_read_b128 {v(MEM+4*kk,4)}, v{(2,7,66)[kk//2-1]} offset:{1024*(kk&1)}" for kk in range(2,7)]
    sl={NB-1:[W0,"s_barrier"],13:["s_waitcnt lgkmcnt(7)"],19:["s_waitcnt lgkmcnt(6)"],25:[W0],27:["s_waitcnt vmcnt(0)"] if AP else []}
    for i,t in enumerate(rd): sl[NB+i]=[t]
    if APD: assert APS not in sl; sl[APS]=['global_load_lds_dword v67, s[38:39]']
    for i,t in zip((9,10,11,12,14,15),kr): sl[i]=[t]
    for i,(j,t) in enumerate([(j,t) for j in range(2) for t in (0,1,6,2,3,4,5)]+[(j,t) for j in range(2,7) for t in (0,1,6)]): add(sm(t,j),*sl.get(i,[]))
    c=lambda d,t: cv(d,acc[t])
    k1=keys(1); k2=keys(2); T6=118
    add(sm(2,2),c(Tb,0)[0]); add(sm(3,2),c(Tb,0)[1]); add(sm(2,3),c(Tb+4,1)[0]); add(mt(0,Tb),c(Tb+4,1)[1],c(Tb+2,6)[0])
    add(sm(3,3),c(Tb+2,6)[1]); add(mt(1,Tb+4)); add(mt(6,Tb+2),*c(TTb,0)); add(sm(2,4))
    add(sm(3,4),c(TTb+2,1)[0]); add(sm(2,5),c(TTb+2,1)[1]); add(sm(3,5),c(T6,6)[0]); add(ms(0,1),c(T6,6)[1])
    add(ms(1,1),k1[0]); add(ms(2,1),k1[1]); add(sm(2,6),k1[2]); add(sm(3,6))
    add(ms6(0),*c(Tb,2)); add(ms6(1)); add(ms6(2),*c(Tb+4,3))
    add(mt(2,Tb)); add(sm(4,2)); add(mt(3,Tb+4)); add(sm(4,3),W0); add(sm(4,4),c(TTb,2)[0]); add(sm(4,5),c(TTb,2)[1])
    add(sm(4,6),c(TTb+2,3)[0]); add(sm(5,2),c(TTb+2,3)[1]); add(sm(5,3),c(Tb,4)[0]); add(ms(0,0),c(Tb,4)[1])
    add(ms(1,0),k2[0]); add(ms(2,0),k2[1]); add(mt(4,Tb),k2[2])
    add(sm(5,4)); add(sm(5,5),c(TTb,4)[0])
    add(sm(5,6),c(TTb,4)[1],*c(Tb+4,5)); add(mt(5,Tb+4),W0,*c(TTb+2,5))
    add(ms(0,0)); add(ms(1,0)); add(ms(2,0))
    weave(g,M,side)
    g("s_mov_b64 exec, s[46:47]")
    for i in range(3): g(f"ds_write_b128 v{vPW}, {v(S+4*i,4)} offset:{1024*i}")
    g("s_mov_b64 exec, -1")
    g(f"""
    s_waitcnt lgkmcnt(0)
    s_barrier
    s_cmp_lg_u32 s16, 0
    s_cbranch_scc1 AL_SKIP""")
    if prof: g(f"{TM} s[54:55]")
    for w in range(4):
        g(f"ds_read_b128 {v(36+4*w,4)}, v{vPR1} offset:{3072*w}")
        if w&1: g(f"ds_read2st64_b32 {v(51+w,2)}, v{vPR2} offset0:{12*(w-1)} offset1:{12*w}")
    g(f"""
    s_waitcnt lgkmcnt(4)
    v_pk_add_f32 v[36:37], v[36:37], v[40:41]
    v_pk_add_f32 v[38:39], v[38:39], v[42:43]
    s_waitcnt lgkmcnt(0)
    v_pk_add_f32 v[44:45], v[44:45], v[48:49]
    v_pk_add_f32 v[46:47], v[46:47], v[50:51]
    v_pk_add_f32 v[52:53], v[52:53], v[54:55]
    v_pk_add_f32 v[36:37], v[36:37], v[44:45]
    v_pk_add_f32 v[38:39], v[38:39], v[46:47]
    v_add_f32 v40, v52, v53
    v_max3_f32 v41, v36, v37, v38
    v_max3_f32 v41, v41, v39, v40
    v_max_f32_dpp v41, v41, v41 quad_perm:[1,0,3,2] row_mask:0xf bank_mask:0xf
    v_mov_b32 v42, v41
    v_permlane16_swap_b32 v41, v42
    v_max_f32 v41, v41, v42
    v_mov_b32 v42, v41
    v_permlane32_swap_b32 v41, v42
    v_max_f32 v41, v41, v42
    v_mul_f32 v41, s43, v41
    v_fma_f32 v36, v36, s43, -v41
    v_fma_f32 v37, v37, s43, -v41
    v_exp_f32 v36, v36
    v_fma_f32 v38, v38, s43, -v41
    v_exp_f32 v37, v37
    v_fma_f32 v39, v39, s43, -v41
    v_exp_f32 v38, v38
    v_fma_f32 v40, v40, s43, -v41
    v_exp_f32 v39, v39
    v_add_f32 v41, v36, v37
    v_exp_f32 v40, v40
    v_add_f32 v41, v41, v38
    v_add_f32 v42, v39, v40
    v_add_f32 v41, v41, v42
    v_add_f32_dpp v41, v41, v41 quad_perm:[1,0,3,2] row_mask:0xf bank_mask:0xf
    v_mov_b32 v42, v41
    v_permlane16_swap_b32 v41, v42
    v_add_f32 v41, v41, v42
    v_mov_b32 v42, v41
    v_permlane32_swap_b32 v41, v42
    v_add_f32 v41, v41, v42
    v_rcp_f32 v41, v41
    v_pk_mul_f32 v[36:37], v[36:37], v[40:41] op_sel:[0,1] op_sel_hi:[1,1]
    v_pk_mul_f32 v[38:39], v[38:39], v[40:41] op_sel:[0,1] op_sel_hi:[1,1]
    v_mul_f32 v40, v40, v41
    v_cvt_pk_bf16_f32 v42, |v36|, |v37|
    v_cvt_pk_bf16_f32 v43, |v38|, |v39|
    v_cvt_pk_bf16_f32 v44, |v40|, |v40|
    {'' if TRIM else 'v_and_b32 v42, s44, v42'+chr(10)+'v_and_b32 v43, s44, v43'+chr(10)+'v_and_b32 v44, s44, v44'}
    s_cmp_eq_u32 s40, 0
    s_cbranch_scc1 AL_SLOW
    global_store_dwordx2 v{vS1}, v[42:43], s[32:33]
    global_store_short v{vS2}, v44, s[32:33]
    {PD_A}
    s_branch AL_SKIP
    AL_SLOW:
    global_store_dwordx2 v{vS1}, v[42:43], s[32:33] sc1
    global_store_short v{vS2}, v44, s[32:33] sc1
    AL_SKIP:
    """)
    if prof:
        g(f"""{TM} s[56:57]
        s_cmp_lg_u32 s16, 0
        s_cbranch_scc1 AL_NP
        s_waitcnt lgkmcnt(0)
        v_mov_b32 v36, s50
        v_mov_b32 v37, s52
        v_mov_b32 v38, s54
        v_mov_b32 v39, s56
        s_mul_i32 s20, s17, 1024
        s_lshl_b32 s21, s45, 4
        s_add_u32 s20, s20, s21
        s_add_u32 s20, s20, {WSEND}
        v_mov_b32 v40, s20
        global_store_dwordx4 v40, v[36:39], s[4:5]
        AL_NP:""")
    for t in xdma(): g(t)
    for i in list(range(36,56,2))+list(range(98,106,2)): g(f"v_mov_b64 {v(i,2)}, 0")
    g(f"v_xor_b32 v{vXR}, 0x18000, v{vXR}\nv_xor_b32 v{vXR2}, 0x18000, v{vXR2}")
    if APD: g(f"""s_cmp_eq_u32 s59, 0
    s_cbranch_scc1 AL_F1
    v_lshrrev_b32 v35, 4, v108
    v_and_b32 v35, 7, v35
    v_lshlrev_b32 v35, 8, v35
    v_add_u32 v35, {F_VX}, v35
    global_load_dword v34, v35, s[4:5] sc1
    s_waitcnt vmcnt(0)
    v_cmp_gt_u32 vcc, {NVX}, v34
    s_mov_b32 s59, vcc_lo
    AL_F1:
    s_cmp_ge_u32 s45, {62-APD}
    s_cselect_b32 s20, 0, 458752
    s_add_u32 s48, s48, s20
    s_addc_u32 s49, s49, 0
    s_cmp_eq_u32 s59, 0
    s_cselect_b32 s38, s48, s4
    s_cselect_b32 s39, s49, s5""")
    if SLA: g(f"s_cmp_eq_u32 s16, 0\ns_cbranch_scc1 AL_S0\ns_sleep {SLA[1]}\nAL_S0:\ns_sleep {SLA[0]}")
    g(f"""
    s_add_u32 s30, s30, 7168
    s_addc_u32 s31, s31, 0
    s_add_u32 s32, s32, 10240
    s_addc_u32 s33, s33, 0
    s_add_u32 s45, s45, 1
    s_cmp_lt_u32 s45, 63
    s_cbranch_scc1 AL_LOOP
    """)
    if prof: g(f"""s_memrealtime s[50:51]
    s_mov_b32 s41, 0
    s_waitcnt lgkmcnt(0)
    AL_CAL:
    s_memrealtime s[52:53]
    s_memtime s[54:55]
    s_add_u32 s41, s41, 1
    s_cmp_gt_u32 s41, 1000
    s_cbranch_scc1 AL_CAL2
    s_waitcnt lgkmcnt(0)
    s_cmp_eq_u32 s50, s52
    s_cbranch_scc1 AL_CAL
    AL_CAL2:
    s_mul_i32 s20, s17, 1024
    s_add_u32 s20, s20, {WSEND+0+63*16}
    v_mov_b32 v12, s20
    v_mov_b32 v8, s52
    v_mov_b32 v9, s54
    s_cmp_lg_u32 s16, 0
    s_cbranch_scc1 AL_EXIT
    global_store_dwordx2 v12, v[8:9], s[4:5]""")
    g(f"""
    AL_EXIT:
    s_waitcnt vmcnt(0)
    s_endpgm
    """)

def beta(g, prof=False, flags=False, gamma=False):
    T='GA' if gamma else 'BE'
    MEM=8; WT=52; Ub=68; US=84; PO=92; D=104; PL=40; VO=8
    vP0,vP1,vL=0,1,2; vWL,vVR,vD0,vD1,vU=3,4,5,6,7; IDX=113
    vRW,vRR,vM1,vM2,vPx,vPm=120,121,122,123,124,125
    acc=(lambda hh,ct: 36+8*(hh&1)+4*ct) if gamma else (lambda hh,ct: (36,44,84,104)[hh]+4*ct)
    g(f"""
    {'s_cmp_ge_u32 s17, 14' if gamma else 's_sub_u32 s17, s17, 16'}
    {'s_cselect_b32 s45, 1, 0' if gamma else ''}
    {'s_cselect_b32 s20, 14, 0' if gamma else ''}
    {'s_sub_u32 s17, s17, s20' if gamma else ''}
    s_mul_i32 s20, s17, 458752
    s_mul_i32 s21, s16, 114688
    s_add_u32 s20, s20, s21
    s_add_u32 s20, s20, {WB}
    s_add_u32 s36, s4, s20
    s_addc_u32 s37, s5, 0
    v_and_b32 v118, 63, v0
    v_lshlrev_b32 v118, 4, v118
    s_lshl_b32 s42, s16, 14
    s_add_u32 s42, s42, 0x18000
    """)
    for tl in range(8):
        g(f"v_add_u32 v119, {tl*14336}, v118")
        for kk in range(6):
            if kk and kk%2==0: g("v_add_u32 v119, 4096, v119")
            for h2 in range(2): g(f"global_load_dwordx4 {sub(wreg_b(tl*6+kk),h2)}, v119, s[36:37] offset:{(kk%2)*2048+h2*1024}")
        g(f"v_add_u32 v119, 4096, v119\ns_add_u32 m0, s42, {tl*2048}\ns_nop 0")
        for h2 in range(2): g(f"global_load_lds_dwordx4 v119, s[36:37] offset:{h2*1024}")
    if not gamma: team_sync(g,"BE")
    common_setup(g)
    g(f"""
    v_add_u32 v{vWL}, s42, v2
    s_lshl_b32 s42, s16, 13
    s_add_u32 s42, s42, 0x8000
    v_add_u32 v{vVR}, s42, v2
    s_lshl_b32 s20, s16, 13
    v_add_u32 v{vD0}, s20, v2
    v_add_u32 v{vD1}, 4096, v{vD0}
    s_lshl_b32 s20, s17, 15
    s_add_u32 s20, s20, {VX}
    s_add_u32 s34, s4, s20
    s_addc_u32 s35, s5, 0
    v_and_b32 v98, 1, v119
    v_lshrrev_b32 v99, 1, v119
    v_lshlrev_b32 v100, 5, v98
    v_lshl_add_u32 v100, v99, 4, v100
    v_add_u32 v100, v100, v117
    v_lshlrev_b32 v100, 4, v100
    s_lshl_b32 s20, s16, 11
    v_add_u32 v{vU}, s20, v100
    s_lshl_b32 s20, s17, 13
    s_add_u32 s20, s20, {UB}
    s_add_u32 s46, s4, s20
    s_addc_u32 s47, s5, 0
    s_lshl_b32 s20, s16, 10
    s_add_u32 s20, s20, 0x2000
    v_lshlrev_b32 v100, 2, v118
    v_add_u32 v{vRW}, s20, v100
    s_lshl_b32 s20, s16, 8
    s_add_u32 s20, s20, 0x2000
    v_and_b32 v100, 31, v118
    v_lshlrev_b32 v101, 3, v100
    v_add_u32 v{vRR}, s20, v101
    v_bfe_u32 v101, v118, 4, 1
    v_bfe_u32 v102, v118, 3, 1
    v_lshlrev_b32 v102, 2, v102
    v_add_u32 v102, s16, v102
    v_lshlrev_b32 v102, 4, v102
    v_lshl_add_u32 v102, v101, 8, v102
    s_lshl_b32 s20, s17, 9
    v_add_u32 v102, s20, v102
    v_bfe_u32 v103, v118, 2, 1
    v_lshl_add_u32 v104, v103, 7, v102
    v_and_b32 v105, 3, v118
    v_lshl_add_u32 v{vM1}, v105, 2, v104
    v_add_u32 v{vM1}, 7168, v{vM1}
    v_add_u32 v{vM2}, 7168, v{vM1}
    v_mov_b32 v126, -1
    s_add_u32 s48, s4, {MEM2}
    s_addc_u32 s49, s5, 0
    s_lshl_b32 s20, s16, 11
    v_add_u32 v{vPx}, s20, v2
    v_lshlrev_b32 v102, 8, v99
    v_lshl_add_u32 v102, v117, 4, v102
    s_lshl_b32 s20, s16, 9
    s_add_u32 s20, s20, 8192
    v_add_u32 v{vPm}, s20, v102
    s_mov_b32 s44, 0x80008000
    {'' if gamma else 's_mov_b32 s45, 0'}
    """)
    def vdma():
        L=[]
        for hf in range(2):
            for i in range(4):
                p=f"s_add_u32 m0, s42, {4096*hf}\ns_nop 0\n" if i==0 else ""
                L.append(p+f"global_load_lds_dwordx4 v{vD0+hf}, s[34:35] offset:{1024*i}")
        L.append("s_add_u32 s34, s34, 458752\ns_addc_u32 s35, s35, 0\ns_xor_b32 s42, s42, 0x18000")
        return L
    if gamma:
        g(f"""s_lshl_b32 s20, s17, 4
        s_lshl_b32 s21, s16, 2
        s_add_u32 s20, s20, s21
        s_lshl_b32 s21, s45, 8
        s_add_u32 s20, s20, s21
        s_add_u32 s20, s20, {F_STEP-512}
        v_mov_b32 v114, s20
        s_mul_i32 s20, s45, 7168
        s_add_u32 s30, s48, s20
        s_addc_u32 s31, s49, 0
        s_mul_i32 s20, s45, 114688
        s_add_u32 s46, s46, s20
        s_addc_u32 s47, s47, 0""")
    if flags and not gamma:
        g(f"""v_min_u32 v112, 7, v118
        v_lshlrev_b32 v112, 8, v112
        v_add_u32 v112, {F_VX}, v112
        s_mov_b32 s41, 0
        BE_V0:
        global_load_dword v115, v112, s[4:5] sc1
        s_add_u32 s41, s41, 1
        s_cmp_gt_u32 s41, {SPIN}
        s_cbranch_scc1 BE_EXIT
        s_waitcnt vmcnt(0)
        v_cmp_gt_u32 vcc, {NVX}, v115
        s_mov_b32 s59, vcc_lo
        s_bitcmp1_b32 s59, 0
        s_cbranch_scc1 BE_V0
        """)
    VE=int(os.environ.get('VE','0'))
    def vd2(tag, inc):
        g(f"s_cmp_lt_u32 s16, 2\ns_cbranch_scc1 {tag}")
        for q in range(4):
            g(f"s_add_u32 s36, s34, {4096*q}\ns_addc_u32 s37, s35, 0\ns_add_u32 m0, s42, {4096*q}\ns_nop 0")
            for i in range(4): g(f"global_load_lds_dwordx4 v{vD0}, s[36:37] offset:{1024*i}")
        g(f"s_add_u32 s34, s34, {inc}\ns_addc_u32 s35, s35, 0\ns_xor_b32 s42, s42, 0x18000\n{tag}:")
    if not gamma and VE==2:
        g(f"""s_and_b32 s20, s16, 1
        s_lshl_b32 s21, s20, 14
        v_add_u32 v{vD0}, s21, v2
        s_add_u32 s42, s21, 0x8000
        s_mul_i32 s20, s20, 3072
        v_add_u32 v0, s20, v2""")
        vd2("BE_D0",458752); vd2("BE_D1",458752); g("s_waitcnt vmcnt(0)")
    elif not gamma:
        for t in vdma()*(1+VE): g(t)
    for i in list(range(36,52))+([] if gamma else list(range(84,92))+list(range(104,112))): g(f"v_mov_b32 v{i}, 0")
    if PD and not gamma: g(f"s_cmp_eq_u32 s40, 0\ns_cbranch_scc1 BE_LOOP\ns_mov_b32 exec_hi, 0\nglobal_store_dword v{vM1}, v126, s[30:31]\ns_mov_b32 exec_hi, -1")
    g(f"{T}_LOOP:")
    PLr=104
    if gamma:
        poll_mem(g,T,PLr,vP0,vP1)
        g("s_cmp_lt_u32 s45, 2\ns_cbranch_scc1 GA_NF\nglobal_store_dword v114, v113, s[4:5] sc1\nGA_NF:\nv_add_u32 v114, 512, v114")
    elif VE==2:
        g(f"s_cmp_ge_u32 s16, 2\ns_cbranch_scc1 BE_PB\ns_mov_b32 s41, 0\nBE_PM:")
        for i in range(4): g(f"global_load_dwordx4 {v(8+4*i,4)}, v0, s[30:31] offset:{1024*i} sc1")
        g(f"s_add_u32 s41, s41, 1\ns_cmp_gt_u32 s41, {SPIN}\ns_cbranch_scc1 BE_EXIT\ns_waitcnt vmcnt(0)\nv_max_u32 v116, v8, v9")
        for i in range(7): g(f"v_max3_u32 v116, v116, v{10+2*i}, v{11+2*i}")
        g("v_cmp_eq_u32 vcc, -1, v116\ns_cbranch_vccnz BE_PM")
        for i in range(4): g(f"ds_write_b128 v0, {v(8+4*i,4)} offset:{1024*i}")
        g("s_waitcnt lgkmcnt(0)\nBE_PB:\ns_barrier")
    else:
        ED=int(os.environ.get('ED','0'))
        g("s_cmp_ge_u32 s45, 61\ns_cselect_b32 s58, 0, 458752")
        poll_mem(g,T,PO,vP0,vP1,None,[t.replace("458752","s58") for t in vdma()] if ED else [])
    if prof: g(f"{TM} s[52:53]")
    for kk in range(7): g(f"ds_read_b128 {v(MEM+4*kk,4)}, v{vL} offset:{1024*kk}")
    if flags and not gamma: g(f"s_cmp_eq_u32 s59, 0\ns_cbranch_scc1 BE_V1\nglobal_load_dword v115, v112, s[4:5] sc1\nBE_V1:")
    def wl(hh): return [f"ds_read_b128 {v(WT+8*ct+4*h2,4)}, v{vWL} offset:{(hh*2+ct)*2048+h2*1024}" for ct in range(2) for h2 in range(2)]
    def sm(hh,ct,kk):
        w=wreg_b((hh*2+ct)*6+kk) if kk<6 else v(WT+8*ct,8)
        return f"v_smfmac_f32_16x16x64_bf16 {v(acc(hh,ct),4)}, {v(MEM+4*kk,4)}, {w}, v{IDX}"
    def post(hh):
        L=[]
        if not gamma:
          for ct in range(2):
            A=acc(hh,ct); d=Ub+8*ct+2*hh
            L+=[f"v_cvt_pk_bf16_f32 v{d}, v{A}, v{A+1}", f"v_cvt_pk_bf16_f32 v{d+1}, v{A+2}, v{A+3}"]
        A=acc(hh,0);B=acc(hh,1)
        if not gamma: return L+[f"v_mov_b32 v{A+i}, 0" for i in range(8)]
        L+=[f"v_permlane32_swap_b32 v{A+i}, v{B+i}" for i in range(4)]
        L+=[f"v_pk_add_f32 {v(A,2)}, {v(A,2)}, {v(B,2)}", f"v_pk_add_f32 {v(A+2,2)}, {v(A+2,2)}, {v(B+2,2)}"]
        d=US+4*(hh>>1)+2*(hh&1)
        L+=[f"v_cvt_pk_bf16_f32 v{d}, v{A}, v{A+1}", f"v_cvt_pk_bf16_f32 v{d+1}, v{A+2}, v{A+3}"]
        if hh&1: L.append(f"global_store_dwordx4 v{vU}, {v(US+4*(hh>>1),4)}, s[46:47] offset:{1024*(hh>>1)} sc1")
        L+=[f"v_mov_b32 v{A+i}, 0" for i in range(8)]
        return L
    vd=vdma()
    cvs=lambda hh: [f"v_cvt_pk_bf16_f32 v{Ub+8*ct+2*hh+i}, v{acc(hh,ct)+2*i}, v{acc(hh,ct)+2*i+1}" for ct in range(2) for i in range(2)]
    vo=[f"ds_read_b128 {v(VO+16*p+8*ct+4*j,4)}, v{vVR} offset:{((2*p+j)*2+ct)*1024}" for p in range(2) for ct in range(2) for j in range(2)]
    if not gamma:
        assert not VE and not PIPE
        g("s_cmp_ge_u32 s45, 61\ns_cselect_b32 s58, 0, 458752\ns_mov_b32 m0, s42")
        M=[sm(hh,ct,kk) for hh in range(4) for kk in range(7) for ct in range(2)]
        side={-1:wl(0)+["s_waitcnt lgkmcnt(10)"]}
        ld=[f"global_load_lds_dwordx4 v{vD0+i//4}, s[34:35] offset:{1024*(i%4)}" for i in range(8)]
        for kk in range(1,6): side[2*kk-1]=[f"s_waitcnt lgkmcnt({10-kk})"]
        for i in range(4): side[2*i]=[ld[i]]
        side[8]=["s_add_u32 m0, s42, 4096"]; side[10]=[ld[4]]; side[12]=[ld[5]]; side[13]=[ld[6]]
        for hh in range(4):
            side[14*hh+11]=["s_waitcnt lgkmcnt(0)"]
            if hh:
                for i,t in enumerate(wl(hh)+cvs(hh-1)): side[14*hh+i]=[t]
        side[22]=[ld[7]]; side[23]=["s_add_u32 s34, s34, s58"]; side[24]=["s_addc_u32 s35, s35, 0"]; side[26]=["s_xor_b32 s42, s42, 0x18000"]
        side[54]=[vo[0]]
        if ED:
            for i in (0,2,4,6,8,10,12,13,22,23,24,26): del side[i]
        weave(g,M,side)
    for hh in range(4 if gamma else 0):
        M=[];side={}
        for kk in range(7):
            if hh==0: side.setdefault(len(M)-1,[]).append(f"s_waitcnt lgkmcnt({6-kk+4 if kk<6 else 0})")
            elif kk==6: side.setdefault(len(M)-1,[]).append("s_waitcnt lgkmcnt(0)")
            M+=[sm(hh,0,kk),sm(hh,1,kk)]
        side.setdefault(-1,[])[:0]=wl(hh)
        if hh==0:
          if not gamma and not VE:
            g("s_cmp_ge_u32 s45, 61\ns_cselect_b32 s58, 0, 458752")
            vd[-1]=vd[-1].replace("458752","s58")
            for i,t in enumerate(vd):
                if 'load' in t and os.environ.get('NOVD'): continue
                side.setdefault(2+i,[]).append(t)
        else:
            P=post(hh-1)
            for i,t in enumerate(P): side.setdefault(4+i//3,[]).append(t)
        weave(g,M,side)
    if gamma:
        for t in post(3): g(t)
    if gamma:
        g(f"""
        s_add_u32 s46, s46, {2*114688}
        s_addc_u32 s47, s47, 0
        s_add_u32 s30, s30, {2*7168}
        s_addc_u32 s31, s31, 0
        s_add_u32 s45, s45, 2
        s_barrier
        s_cmp_lt_u32 s45, 64
        s_cbranch_scc1 GA_LOOP
        s_waitcnt vmcnt(0)
        global_store_dword v114, v113, s[4:5] sc1
        GA_EXIT:
        s_waitcnt vmcnt(0)
        s_endpgm
        """)
        return
    if prof: g(f"{TM} s[54:55]")
    if SLB: g(f"s_sleep {SLB}")
    iss=lambda X: f"""global_load_dwordx4 {v(X,4)}, v{vPx}, s[32:33] sc1
    global_load_dwordx4 {v(X+4,4)}, v{vPx}, s[32:33] offset:1024 sc1
    global_load_dwordx4 {v(X+8,4)}, v{vPm}, s[32:33] sc1"""
    chk=lambda X: f"""v_or3_b32 v116, v{X}, v{X+1}, v{X+2}
    v_or3_b32 v117, v{X+3}, v{X+4}, v{X+5}
    v_or3_b32 v116, v116, v{X+6}, v{X+7}
    v_or3_b32 v117, v117, v{X+8}, v{X+9}
    v_or3_b32 v116, v116, v{X+10}, v{X+11}
    v_or_b32 v116, v116, v117
    v_and_b32 v116, s44, v116
    v_cmp_ne_u32 vcc, 0, v116"""
    def fin(X):
        if prof: g(f"{TM} s[56:57]")
        for p in range(2):
            for ct in range(2): g(f"v_smfmac_f32_16x16x64_bf16 {v(D+4*ct,4)}, {v(X+4*p,4)}, {v(VO+16*p+8*ct,8)}, v{IDX}")
        for ct in range(2): g(f"v_smfmac_f32_16x16x64_bf16 {v(D+4*ct,4)}, {v(X+8,4)}, {v(Ub+8*ct,8)}, v{IDX}")
    if PIPE:
        g(f"""
        s_mov_b32 s41, 0
        {iss(PO)}
        s_sleep {PSL}
        BE_PP:
        {iss(WT)}
        s_add_u32 s41, s41, 1
        s_cmp_gt_u32 s41, {SPIN}
        s_cbranch_scc1 BE_EXIT
        s_waitcnt vmcnt(3) lgkmcnt(0)
        {chk(PO)}
        s_cbranch_vccz BE_QA
        {iss(PO)}
        s_waitcnt vmcnt(3)
        {chk(WT)}
        s_cbranch_vccnz BE_PP""")
        fin(WT)
        g("s_branch BE_QJ\nBE_QA:")
        fin(PO)
        g("BE_QJ:")
    else:
        g(f"""
        s_mov_b32 s41, 0
        {iss(PO)}
        {chr(10).join(vo[1:]+cvs(3)+[f"v_mov_b64 {v(D+2*i,2)}, 0" for i in range(4)])}
        v_xor_b32 v{vVR}, 0x18000, v{vVR}
        s_branch BE_PQ
        BE_PP:
        {iss(PO)}
        BE_PQ:
        s_add_u32 s41, s41, 1
        s_cmp_gt_u32 s41, {SPIN}
        s_cbranch_scc1 BE_EXIT
        s_waitcnt vmcnt(0) lgkmcnt(0)
        {chk(PO)}
        s_cbranch_vccnz BE_PP""")
        fin(PO)
    for i in range(4): g(f"v_permlane32_swap_b32 v{D+i}, v{D+4+i}")
    g(f"""
    v_pk_add_f32 {v(D,2)}, {v(D,2)}, {v(D+4,2)}
    v_pk_add_f32 {v(D+2,2)}, {v(D+2,2)}, {v(D+6,2)}
    ds_write2st64_b32 v{vRW}, v{D}, v{D+1} offset0:0 offset1:1
    ds_write2st64_b32 v{vRW}, v{D+2}, v{D+3} offset0:2 offset1:3
    s_waitcnt lgkmcnt(0)
    s_barrier
    ds_read2st64_b64 v[8:11], v{vRR} offset0:0 offset1:2
    ds_read2st64_b64 v[12:15], v{vRR} offset0:4 offset1:6
    s_mov_b32 exec_hi, 0
    s_waitcnt lgkmcnt(1)
    v_pk_add_f32 v[8:9], v[8:9], v[10:11]
    s_waitcnt lgkmcnt(0)
    v_pk_add_f32 v[12:13], v[12:13], v[14:15]
    v_pk_add_f32 v[8:9], v[8:9], v[12:13]
    v_cvt_pk_bf16_f32 v8, v8, v9
    v_min_u32 v8, -2, v8
    s_cmp_eq_u32 s40, 0
    s_cbranch_scc1 BE_SLOW
    global_store_dword v{vM1}, v8, s[30:31]
    {f"global_store_dword v{vM2}, v126, s[30:31]" if PD else ""}
    s_branch BE_PUB
    BE_SLOW:
    global_store_dword v{vM1}, v8, s[30:31] sc1
    BE_PUB:
    {f"{TM} s[50:51]" if prof else ""}
    s_mov_b32 exec_hi, -1
    {chr(10).join(f"v_mov_b64 {v(i,2)}, 0" for i in list(range(36,52,2))+list(range(84,92,2))+list(range(104,112,2)))}
    """)
    if prof:
        g(f"""s_cmp_lg_u32 s16, 0
        s_cbranch_scc1 BE_NP
        s_waitcnt lgkmcnt(0)
        v_mov_b32 v8, s50
        v_mov_b32 v9, s52
        v_mov_b32 v10, s54
        v_mov_b32 v11, s56
        s_mul_i32 s20, s17, 1024
        s_lshl_b32 s21, s45, 4
        s_add_u32 s20, s20, s21
        s_add_u32 s20, s20, {WSEND+16384}
        v_mov_b32 v12, s20
        global_store_dwordx4 v12, v[8:11], s[4:5]
        BE_NP:""")
    if flags:
        g(f"""s_cmp_eq_u32 s59, 0
        s_cbranch_scc1 BE_V3
        s_add_u32 s20, s45, 2
        s_lshr_b32 s20, s20, 3
        s_mov_b32 s41, 0
        BE_V2:
        v_cmp_gt_u32 vcc, {NVX}, v115
        s_mov_b32 s59, vcc_lo
        s_bitcmp0_b32 s59, s20
        s_cbranch_scc1 BE_V3
        global_load_dword v115, v112, s[4:5] sc1
        s_add_u32 s41, s41, 1
        s_cmp_gt_u32 s41, {SPIN}
        s_cbranch_scc1 BE_EXIT
        s_waitcnt vmcnt(0)
        s_branch BE_V2
        BE_V3:""")
    if VE: g("s_cmp_ge_u32 s45, 60\ns_cselect_b32 s58, 0, 458752")
    if VE==2: vd2("BE_D2","s58")
    elif VE:
        vd[-1]=vd[-1].replace("458752","s58")
        for t in vd: g(t)
    g(f"""
    s_add_u32 s30, s30, 7168
    s_addc_u32 s31, s31, 0
    s_add_u32 s32, s32, 10240
    s_addc_u32 s33, s33, 0
    s_add_u32 s45, s45, 1
    {f"s_sleep {SLC}" if SLC else ""}
    s_cmp_lt_u32 s45, 63
    s_cbranch_scc1 BE_LOOP
    """)
    if prof: g(f"""s_memrealtime s[50:51]
    s_mov_b32 s41, 0
    s_waitcnt lgkmcnt(0)
    BE_CAL:
    s_memrealtime s[52:53]
    s_memtime s[54:55]
    s_add_u32 s41, s41, 1
    s_cmp_gt_u32 s41, 1000
    s_cbranch_scc1 BE_CAL2
    s_waitcnt lgkmcnt(0)
    s_cmp_eq_u32 s50, s52
    s_cbranch_scc1 BE_CAL
    BE_CAL2:
    s_mul_i32 s20, s17, 1024
    s_add_u32 s20, s20, {WSEND+16384+63*16}
    v_mov_b32 v12, s20
    v_mov_b32 v8, s52
    v_mov_b32 v9, s54
    s_cmp_lg_u32 s16, 0
    s_cbranch_scc1 BE_EXIT
    global_store_dwordx2 v12, v[8:9], s[4:5]""")
    g(f"""
    BE_EXIT:
    s_waitcnt vmcnt(0)
    s_endpgm
    """)

def eta(g):
    team_sync(g,"ET")
    NI=65536//(64*PFS)
    g(f"""
    s_sub_u32 s17, s17, 30
    s_lshl_b32 s17, s17, 2
    s_add_u32 s17, s17, s16
    v_and_b32 v2, 63, v0
    s_cmp_lg_u32 s17, 0
    s_cbranch_scc1 ET_PF
    v_lshlrev_b32 v3, 4, v2
    v_add_u32 v4, 4096, v3
    s_add_u32 s30, s4, {MEMB+7168}
    s_addc_u32 s31, s5, 0
    s_add_u32 s32, s4, {MEM2+7168}
    s_addc_u32 s33, s5, 0
    s_mov_b32 s45, 1
    ET_CL:
    s_mov_b32 s41, 0
    ET_CP:""")
    for kk in range(7): g(f"global_load_dwordx4 {v(8+4*kk,4)}, v{3+kk//4}, s[30:31] offset:{1024*(kk%4)} sc1")
    g(f"""s_add_u32 s41, s41, 1
    s_cmp_gt_u32 s41, {SPIN}
    s_cbranch_scc1 ET_EXIT
    s_waitcnt vmcnt(0)
    v_max_u32 v5, v8, v9""")
    for i in range(13): g(f"v_max3_u32 v5, v5, v{10+2*i}, v{11+2*i}")
    g("v_cmp_eq_u32 vcc, -1, v5\ns_cbranch_vccz ET_CS\ns_sleep 1\ns_branch ET_CP\nET_CS:")
    for kk in range(7): g(f"global_store_dwordx4 v{3+kk//4}, {v(8+4*kk,4)}, s[32:33] offset:{1024*(kk%4)} sc1")
    g(f"""s_add_u32 s30, s30, 7168
    s_addc_u32 s31, s31, 0
    s_add_u32 s32, s32, 7168
    s_addc_u32 s33, s33, 0
    s_add_u32 s45, s45, 1
    s_cmp_lt_u32 s45, 63
    s_cbranch_scc0 ET_C2
    s_sleep {ESL}
    ET_C2:
    s_cmp_lt_u32 s45, 64
    s_cbranch_scc1 ET_CL
    s_branch ET_EXIT
    ET_PF:
    s_sub_u32 s17, s17, 1
    s_lshl_b32 s20, s17, 16
    s_add_u32 s20, s20, {VX}
    s_add_u32 s30, s4, s20
    s_addc_u32 s31, s5, 0
    s_lshl_b32 s20, s17, 12
    s_add_u32 s20, s20, {XA}
    s_add_u32 s32, s4, s20
    s_addc_u32 s33, s5, 0
    v_mul_u32_u24 v3, {PFS}, v2
    v_lshlrev_b32 v4, 6, v2
    s_mov_b32 s45, 0
    ET_PL:
    s_and_b32 s20, s45, 7
    s_cmp_lg_u32 s20, 0
    s_cbranch_scc1 ET_P1
    s_lshl_b32 s24, s45, 5
    s_add_u32 s24, s24, {F_VX}""")
    wait_flag(g,24,NVX,"EV","ET_EXIT",sleep=4)
    g(f"""ET_P1:
    s_cmp_lt_u32 s45, {PFD+1}
    s_cbranch_scc1 ET_P2
    s_sub_u32 s24, s45, {PFD}
    s_mul_i32 s24, s24, 7168
    s_add_u32 s24, s24, {MEMB}""")
    wait_flag(g,24,None,"EM","ET_EXIT",sleep=8)
    g("ET_P2:\nglobal_load_dword v31, v4, s[32:33]\nv_mov_b32 v5, v3")
    for i in range(0 if not os.environ.get('PF') else NI): g(f"global_load_dword v{32+i}, v5, s[30:31]\nv_add_u32 v5, {64*PFS}, v5")
    g(f"""s_add_u32 s30, s30, 458752
    s_addc_u32 s31, s31, 0
    s_add_u32 s32, s32, 28672
    s_addc_u32 s33, s33, 0
    s_add_u32 s45, s45, 1
    s_cmp_lt_u32 s45, 63
    s_cbranch_scc1 ET_PL
    ET_EXIT:
    s_waitcnt vmcnt(0)
    s_endpgm""")

def claim(g, addr_off, dst, tag):
    g(f"""
    s_barrier
    s_cmp_lg_u32 s16, 0
    s_cbranch_scc1 {tag}_C1
    v_mov_b32 v1, {addr_off}
    v_mov_b32 v2, 1
    s_mov_b64 exec, 1
    global_atomic_add v3, v1, v2, s[4:5] sc0 sc1
    v_mov_b32 v1, 0x27F00
    s_waitcnt vmcnt(0)
    ds_write_b32 v1, v3
    s_mov_b64 exec, -1
    s_waitcnt lgkmcnt(0)
    {tag}_C1:
    s_barrier
    v_mov_b32 v1, 0x27F00
    ds_read_b32 v2, v1
    s_waitcnt lgkmcnt(0)
    v_readfirstlane_b32 s{dst}, v2
    """)

def team_entry(g, prof=False, **kw):
    g(f"""
    s_add_u32 s20, s19, 1
    v_mov_b32 v2, s20
    s_lshl_b32 s20, s17, 2
    s_add_u32 s20, s20, {F_XCC}
    v_mov_b32 v1, s20
    global_store_dword v1, v2, s[4:5] sc1
    s_cmp_ge_u32 s17, 30
    s_cbranch_scc1 ETA
    s_cmp_ge_u32 s17, 16
    s_cbranch_scc1 BETA
    """)
    alpha(g,prof)
    g("BETA:")
    beta(g,prof,**kw)
    g("ETA:")
    eta(g)

def team_dbg(prof=True, xsel=0, spread=False):
    g=G()
    g(f"""s_cmp_ge_u32 s2, 256
    s_cbranch_scc1 team_END
    s_load_dwordx2 s[4:5], s[0:1], {K_WS}
    s_load_dwordx2 s[8:9], s[0:1], {K_BX}
    s_getreg_b32 s19, hwreg(HW_REG_XCC_ID)
    s_and_b32 s19, s19, 15
    v_lshrrev_b32 v1, 6, v0
    s_nop 0
    v_readfirstlane_b32 s16, v1
    s_waitcnt lgkmcnt(0)""")
    if not spread: g(f"s_cmp_lg_u32 s19, {xsel}\ns_cbranch_scc1 team_END")
    claim(g, F_ROLE, 17, "TD")
    g("s_cmp_ge_u32 s17, 30\ns_cbranch_scc1 team_END")
    team_entry(g,prof)
    g("team_END:")
    return ("team_kernel", g.text(), 512, 256, 256, 256, 160*1024)
```

```python
from gbase import *
import math
import os
SPIN=2000000
from ggemm import VXN
from gpost import wait_flag
PFD=int(os.environ.get('PFD','4'))
ESL=int(os.environ.get('ESL','20'))
NVX=224
BT=int(os.environ.get('BT','1'))
TRIM=int(os.environ.get('TRIM','1'))
TM=os.environ.get('TM','s_memtime')
PD=int(os.environ.get('PD','0'))
SLC=int(os.environ.get('SLC','0'))
PSL=int(os.environ.get('PSL','2'))
PIPE=int(os.environ.get('PIPE','0'))
PFS=int(os.environ.get('PFS','128'))
SLA=eval(os.environ.get('SLA','(9,8)'))
SLB=eval(os.environ.get('SLB','None'))
def wreg_a(b): return r(256+8*b,8) if b<32 else r(120+8*(b-32),8)
def wreg_b(b): return r(256+8*b,8) if b<32 else r(128+8*(b-32),8)
def sub(reg8, half):
    import re
    m=re.match(r'([va])\[(\d+):',reg8); b=int(m.group(2))+4*half
    return f"{m.group(1)}[{b}:{b+3}]"

def team_sync(g, tag):
    g(f"""
    s_add_u32 s36, s4, {F_XCC}
    s_addc_u32 s37, s5, 0
    v_and_b32 v98, 63, v0
    v_min_u32 v98, 31, v98
    v_lshlrev_b32 v98, 2, v98
    s_mov_b32 s41, 0
    {tag}_TS:
    global_load_dword v99, v98, s[36:37] sc1
    s_add_u32 s41, s41, 1
    s_cmp_gt_u32 s41, {SPIN}
    s_cbranch_scc1 {tag}_EXIT
    s_waitcnt vmcnt(0)
    v_cmp_eq_u32 vcc, 0, v99
    s_cbranch_vccnz {tag}_TS
    s_add_u32 s41, s19, 1
    v_cmp_ne_u32 vcc, s41, v99
    s_mov_b32 s40, 1
    s_cbranch_vccz {tag}_TS2
    s_mov_b32 s40, 0
    {tag}_TS2:
    """)

def poll_mem(g, tag, P, vP0, vP1, P2=None, mid=()):
    iss=lambda X: f"global_load_dwordx4 {v(X,4)}, v{vP0}, s[30:31] sc1\nglobal_load_dwordx4 {v(X+4,4)}, v{vP1}, s[30:31] sc1"
    chk=lambda X: f"""v_max3_u32 v116, v{X}, v{X+1}, v{X+2}
    v_max3_u32 v117, v{X+3}, v{X+4}, v{X+5}
    v_max3_u32 v116, v116, v{X+6}, v{X+7}
    v_max_u32 v116, v116, v117
    v_cmp_eq_u32 vcc, -1, v116"""
    wr=lambda X: f"ds_write_b128 v{vP0}, {v(X,4)}\nds_write_b128 v{vP1}, {v(X+4,4)}"
    if P2 is None:
        g(f"""
        s_mov_b32 s41, 0
        {tag}_PM:
        {iss(P)}
        s_add_u32 s41, s41, 1
        s_cmp_gt_u32 s41, {SPIN}
        s_cbranch_scc1 {tag}_EXIT
        s_waitcnt vmcnt(0)
        {chk(P)}
        s_cbranch_vccnz {tag}_PM
        {wr(P)}
        """)
    else:
        g(f"""
        s_mov_b32 s41, 0
        {iss(P)}
        s_sleep {PSL}
        {tag}_PM:
        {iss(P2)}
        s_add_u32 s41, s41, 1
        s_cmp_gt_u32 s41, {SPIN}
        s_cbranch_scc1 {tag}_EXIT
        s_waitcnt vmcnt(2)
        {chk(P)}
        s_cbranch_vccz {tag}_PA
        {iss(P)}
        s_waitcnt vmcnt(2)
        {chk(P2)}
        s_cbranch_vccnz {tag}_PM
        {wr(P2)}
        s_branch {tag}_PJ
        {tag}_PA:
        {wr(P)}
        {tag}_PJ:
        """)
    for t in mid: g(t)
    g("s_waitcnt lgkmcnt(0)\ns_barrier")

def common_setup(g):
    g(f"""
    v_and_b32 v118, 63, v0
    v_lshrrev_b32 v119, 4, v118
    v_and_b32 v117, 15, v118
    s_mul_i32 s20, s16, 112
    v_add_u32 v0, s20, v118
    v_add_u32 v1, 64, v0
    v_min_u32 v1, 447, v1
    v_lshlrev_b32 v0, 4, v0
    v_lshlrev_b32 v1, 4, v1
    v_lshlrev_b32 v2, 4, v118
    v_mov_b32 v113, 0x4444
    v_mov_b32 v116, 0xeeee
    v_cmp_gt_u32 vcc, 8, v117
    v_cndmask_b32 v113, v116, v113, vcc
    s_add_u32 s30, s4, {MEMB}
    s_addc_u32 s31, s5, 0
    s_add_u32 s32, s4, {PB}
    s_addc_u32 s33, s5, 0
    """)

def alpha(g, prof=False):
    APD=int(os.environ.get('APD','0')); APS=int(os.environ.get('APS','8'))
    MEM=8; Tb=56; TTb=62; KEY=68; KEY6=80; S=86; PL=98
    acc={0:36,1:40,6:44,2:48,3:52,4:98,5:102}
    vP0,vP1,vL,vK,vK2,vX0,vX1,vX2=range(8); vXR,vXR2,vPW,vPR1,vPR2,vS1,vS2=range(106,113); IDX=113; I2=114
    g(f"""
    s_mul_i32 s20, s17, 401408
    s_mul_i32 s21, s16, 100352
    s_add_u32 s20, s20, s21
    s_add_u32 s36, s4, s20
    s_addc_u32 s37, s5, 0
    v_and_b32 v119, 63, v0
    v_lshlrev_b32 v119, 4, v119
    """)
    pk=lambda L: sum(c<<(4*i) for i,c in enumerate(L))
    g(f"""s_cmp_eq_u32 s16, 1
    s_cselect_b32 s22, {pk([2,3,0,1,4,5,6])}, {pk([0,1,2,3,4,5,6])}
    s_cmp_eq_u32 s16, 2
    s_cselect_b32 s22, {pk([4,5,0,1,2,3,6])}, s22
    s_cmp_eq_u32 s16, 3
    s_cselect_b32 s22, {pk([6,0,2,3,4,5,1])}, s22""".replace(f"s_cselect_b32 s22, {pk([2,3,0,1,4,5,6])}, {pk([0,1,2,3,4,5,6])}", f"s_mov_b32 s22, {pk([0,1,2,3,4,5,6])}\ns_cselect_b32 s22, {pk([2,3,0,1,4,5,6])}, s22"))
    for j in range(7):
        g(f"s_bfe_u32 s20, s22, {4*j|(4<<16)}\ns_lshl_b32 s20, s20, 11\nv_add_u32 v118, s20, v119")
        for t in range(7):
            if t: g("v_add_u32 v118, 14336, v118")
            for h2 in range(2): g(f"global_load_dwordx4 {sub(wreg_a(t*7+j),h2)}, v118, s[36:37] offset:{h2*1024}")
    team_sync(g,"AL")
    common_setup(g)
    g(f"""
    s_mul_i32 s20, s16, 14
    v_add_u32 v3, s20, v119
    v_lshlrev_b32 v3, 7, v3
    v_and_b32 v116, 7, v118
    v_lshl_add_u32 v3, v116, 4, v3
    s_add_u32 s20, s20, 12
    v_lshrrev_b32 v4, 1, v119
    v_add_u32 v4, s20, v4
    v_lshlrev_b32 v4, 7, v4
    v_lshl_add_u32 v4, v116, 4, v4
    v_and_b32 v98, 1, v119
    v_lshl_add_u32 v4, v98, 3, v4
    s_mul_i32 s20, s16, 7168
    v_add_u32 v5, s20, v2
    v_add_u32 v6, 4096, v5
    s_lshl_b32 s42, s16, 13
    s_add_u32 s42, s42, 0x8000
    v_add_u32 v{vXR}, s42, v2
    v_lshrrev_b32 v100, 1, v119
    v_lshl_add_u32 v100, v100, 4, v117
    v_lshlrev_b32 v100, 4, v100
    v_lshl_add_u32 v100, v98, 3, v100
    v_add_u32 v100, 6144, v100
    v_add_u32 v{vXR2}, s42, v100
    s_mul_i32 s20, s16, 3072
    s_add_u32 s20, s20, 0x4000
    v_add_u32 v{vPW}, s20, v2
    v_bfe_u32 v103, v118, 1, 3
    v_bfe_u32 v100, v118, 4, 1
    v_lshrrev_b32 v102, 5, v118
    v_and_b32 v104, 1, v118
    v_lshl_add_u32 v105, v102, 1, v104
    v_lshlrev_b32 v101, 10, v100
    v_lshl_add_u32 v101, v105, 8, v101
    v_lshl_add_u32 v101, v103, 4, v101
    v_add_u32 v{vPR1}, 0x4000, v101
    v_lshlrev_b32 v101, 8, v100
    v_lshl_add_u32 v101, v103, 4, v101
    v_lshl_add_u32 v101, v105, 2, v101
    v_add_u32 v{vPR2}, 0x4800, v101
    v_lshlrev_b32 v101, 3, v118
    s_lshl_b32 s20, s17, 9
    v_add_u32 v{vS1}, s20, v101
    v_lshlrev_b32 v101, 7, v102
    v_lshl_add_u32 v101, v103, 4, v101
    v_lshl_add_u32 v101, v100, 3, v101
    v_lshl_add_u32 v101, v104, 1, v101
    s_lshr_b32 s20, s17, 1
    s_lshl_b32 s20, s20, 8
    s_and_b32 s21, s17, 1
    s_lshl_b32 s21, s21, 2
    s_add_u32 s20, s20, s21
    s_add_u32 s20, s20, 8192
    v_add_u32 v{vS2}, s20, v101
    v_lshlrev_b32 v100, 2, v98
    v_sub_u32 v100, v117, v100
    v_mov_b32 v101, 0x3f80
    v_mov_b32 v102, 0x3f800000
    v_cmp_eq_u32 vcc, 0, v100
    v_cndmask_b32 v114, 0, v101, vcc
    v_cmp_eq_u32 vcc, 1, v100
    v_cndmask_b32 v114, v114, v102, vcc
    v_cmp_eq_u32 vcc, 2, v100
    v_cndmask_b32 v115, 0, v101, vcc
    v_cmp_eq_u32 vcc, 3, v100
    v_cndmask_b32 v115, v115, v102, vcc
    s_add_u32 s34, s4, {XA}
    s_addc_u32 s35, s5, 0
    s_mov_b32 s43, {f2u(math.log2(math.e)/16)}
    s_mov_b32 s44, 0x7fff7fff
    s_mov_b32 s45, 0
    s_lshl_b32 s20, s16, 11
    v_add_u32 v0, s20, v2
    s_add_u32 s20, s20, 1024
    s_cmp_eq_u32 s16, 3
    s_cselect_b32 s20, 0, s20
    v_add_u32 v1, s20, v2
    s_bfe_u32 s20, s22, {16|(4<<16)}
    s_lshl_b32 s20, s20, 10
    v_add_u32 v7, s20, v2
    s_bfe_u32 s20, s22, {24|(4<<16)}
    s_lshl_b32 s20, s20, 10
    v_add_u32 v66, s20, v2
    s_bfe_u32 s20, s22, {8|(4<<16)}
    s_lshl_b32 s20, s20, 10
    v_add_u32 v2, s20, v2
    s_mul_i32 s20, s17, 28672
    s_mul_i32 s21, s16, 7168
    s_add_u32 s20, s20, s21
    v_min_u32 v67, 55, v118
    v_lshlrev_b32 v67, 7, v67
    v_add_u32 v67, s20, v67
    s_add_u32 s48, s4, {VX+APD*458752}
    s_addc_u32 s49, s5, 0
    s_mov_b32 s38, s4
    s_mov_b32 s39, s5
    s_mov_b32 s59, 1
    s_mov_b32 s46, 0x00ff00ff
    s_mov_b32 s47, 0x00ff00ff
    v_mov_b64 v[56:57], 0
    v_mov_b64 v[58:59], 0
    v_mov_b64 v[60:61], 0
    v_mov_b64 v[62:63], 0
    v_mov_b64 v[64:65], 0
    v_mov_b64 v[116:117], 0
    v_mov_b64 v[118:119], 0
    """)
    def xdma():
        L=[]
        for i in range(7):
            p=f"s_add_u32 m0, s42, {4096*(i//4)}\ns_nop 0\n" if i%4==0 else ""
            L.append(p+f"global_load_lds_dwordx4 v{vX0+i//4}, s[34:35] offset:{1024*(i%4)}")
        L.append("s_add_u32 s34, s34, 28672\ns_addc_u32 s35, s35, 0\ns_xor_b32 s42, s42, 0x18000\ns_mov_b32 m0, 0x7000")
        return L
    for t in xdma(): g(t)
    for i in list(range(36,56,2))+list(range(98,106,2)): g(f"v_mov_b64 {v(i,2)}, 0")
    PD_A=""
    if 0:
        PD_A=f"""s_add_u32 s36, s32, 10240
        s_addc_u32 s37, s33, 0
        global_store_dwordx2 v{vS1}, v[66:67], s[36:37]
        global_store_short v{vS2}, v66, s[36:37]"""
        g(f"""v_mov_b32 v66, -1
        v_mov_b32 v67, -1
        s_cmp_eq_u32 s40, 0
        s_cbranch_scc1 AL_LOOP
        s_cmp_lg_u32 s16, 0
        s_cbranch_scc1 AL_LOOP
        global_store_dwordx2 v{vS1}, v[66:67], s[32:33]
        global_store_short v{vS2}, v66, s[32:33]""")
    g("AL_LOOP:")
    if prof: g(f"{TM} s[50:51]")
    AP=int(os.environ.get('AP','0'))
    iss=lambda X: f"global_load_dwordx4 {v(X,4)}, v0, s[30:31] sc1\nglobal_load_dwordx4 {v(X+4,4)}, v1, s[30:31] sc1"
    chk=lambda X: f"""v_max3_u32 v32, v{X}, v{X+1}, v{X+2}
    v_max3_u32 v33, v{X+3}, v{X+4}, v{X+5}
    v_max3_u32 v32, v32, v{X+6}, v{X+7}
    v_max_u32 v32, v32, v33
    v_cmp_eq_u32 vcc, -1, v32"""
    bound=f"s_add_u32 s41, s41, 1\ns_cmp_gt_u32 s41, {SPIN}\ns_cbranch_scc1 AL_EXIT"
    if not AP: g(f"s_mov_b32 s41, 0\nAL_PM:\n{iss(8)}\n{bound}\ns_waitcnt vmcnt(0)\n{chk(8)}\ns_cbranch_vccnz AL_PM")
    else:
        g(f"""s_mov_b32 s41, 0
        {iss(86)}
        s_sleep {AP}
        AL_PM:
        {iss(8)}
        {bound}
        s_waitcnt vmcnt(2)
        {chk(86)}
        s_cbranch_vccz AL_PB
        {iss(86)}
        s_waitcnt vmcnt(2)
        {chk(8)}
        s_cbranch_vccnz AL_PM
        s_branch AL_PJ
        AL_PB:
        v_mov_b64 v[8:9], v[86:87]
        v_mov_b64 v[10:11], v[88:89]
        v_mov_b64 v[12:13], v[90:91]
        v_mov_b64 v[14:15], v[92:93]
        AL_PJ:""")
    if prof: g(f"{TM} s[52:53]")
    def keys(tp): return [f"ds_read_b128 {v(KEY,4)}, v{vXR} offset:{2048*tp}", f"ds_read_b128 {v(KEY+4,4)}, v{vXR} offset:{2048*tp+1024}", f"ds_read_b128 {v(KEY+8,4)}, v{vK} offset:{512*tp}"]
    keys6=[f"ds_read_b64 {v(KEY6,2)}, v{vXR2}", f"ds_read_b64 {v(KEY6+2,2)}, v{vXR2} offset:512", f"ds_read_b64 {v(KEY6+4,2)}, v{vK2}"]
    sm=lambda t,kk: f"v_smfmac_f32_16x16x64_bf16 {v(acc[t],4)}, {v(MEM+4*kk,4)}, {wreg_a(t*7+kk)}, v{IDX}"
    cv=lambda d,s_: [f"v_cvt_pk_bf16_f32 v{d}, v{s_}, v{s_+1}", f"v_cvt_pk_bf16_f32 v{d+1}, v{s_+2}, v{s_+3}"]
    mt=lambda t,tb: f"v_mfma_f32_16x16x32_bf16 {v(acc[t],4)}, {v(tb,4)}, {v(I2,4)}, 0"
    ms=lambda i,first: f"v_mfma_f32_16x16x32_bf16 {v(S+4*i,4)}, {v(KEY+4*i,4)}, {v(TTb,4)}, {'0' if first else v(S+4*i,4)}"
    ms6=lambda i: f"v_mfma_f32_16x16x32_bf16 {v(S+4*i,4)}, {v(KEY6+2*i-2,4)}, {v(116,4)}, {v(S+4*i,4)}"
    zero=lambda t: [f"v_mov_b32 v{acc[t]+i}, 0" for i in range(4)]
    M=[]; side={}
    def add(m, *sd):
        M.append(m); side.setdefault(len(M)-1,[]).extend(sd)
    NB=int(os.environ.get('NB','3'))
    wr=["ds_write_b128 v0, v[8:11]","ds_write_b128 v1, v[12:15]","ds_write_b128 v0, v[8:11] offset:7168","ds_write_b128 v1, v[12:15] offset:7168"]
    side[-1]=wr[:2]
    kr=keys(0)+keys6
    W0="s_waitcnt lgkmcnt(0)"
    rd=[f"ds_read_b128 {v(MEM+4*kk,4)}, v{(2,7,66)[kk//2-1]} offset:{1024*(kk&1)}" for kk in range(2,7)]
    sl={NB-1:[W0,"s_barrier"],13:["s_waitcnt lgkmcnt(7)"],19:["s_waitcnt lgkmcnt(6)"],25:[W0],27:["s_waitcnt vmcnt(0)"] if AP else []}
    for i,t in enumerate(rd): sl[NB+i]=[t]
    if APD: assert APS not in sl; sl[APS]=['global_load_lds_dword v67, s[38:39]']
    for i,t in zip((9,10,11,12,14,15),kr): sl[i]=[t]
    for i,(j,t) in enumerate([(j,t) for j in range(2) for t in (0,1,6,2,3,4,5)]+[(j,t) for j in range(2,7) for t in (0,1,6)]): add(sm(t,j),*sl.get(i,[]))
    c=lambda d,t: cv(d,acc[t])
    k1=keys(1); k2=keys(2); T6=118
    add(sm(2,2),c(Tb,0)[0]); add(sm(3,2),c(Tb,0)[1]); add(sm(2,3),c(Tb+4,1)[0]); add(mt(0,Tb),c(Tb+4,1)[1],c(Tb+2,6)[0])
    add(sm(3,3),c(Tb+2,6)[1]); add(mt(1,Tb+4)); add(mt(6,Tb+2),*c(TTb,0)); add(sm(2,4))
    add(sm(3,4),c(TTb+2,1)[0]); add(sm(2,5),c(TTb+2,1)[1]); add(sm(3,5),c(T6,6)[0]); add(ms(0,1),c(T6,6)[1])
    add(ms(1,1),k1[0]); add(ms(2,1),k1[1]); add(sm(2,6),k1[2]); add(sm(3,6))
    add(ms6(0),*c(Tb,2)); add(ms6(1)); add(ms6(2),*c(Tb+4,3))
    add(mt(2,Tb)); add(sm(4,2)); add(mt(3,Tb+4)); add(sm(4,3),W0); add(sm(4,4),c(TTb,2)[0]); add(sm(4,5),c(TTb,2)[1])
    add(sm(4,6),c(TTb+2,3)[0]); add(sm(5,2),c(TTb+2,3)[1]); add(sm(5,3),c(Tb,4)[0]); add(ms(0,0),c(Tb,4)[1])
    add(ms(1,0),k2[0]); add(ms(2,0),k2[1]); add(mt(4,Tb),k2[2])
    add(sm(5,4)); add(sm(5,5),c(TTb,4)[0])
    add(sm(5,6),c(TTb,4)[1],*c(Tb+4,5)); add(mt(5,Tb+4),W0,*c(TTb+2,5))
    add(ms(0,0)); add(ms(1,0)); add(ms(2,0))
    weave(g,M,side)
    g("s_mov_b64 exec, s[46:47]")
    for i in range(3): g(f"ds_write_b128 v{vPW}, {v(S+4*i,4)} offset:{1024*i}")
    g("s_mov_b64 exec, -1")
    g(f"""
    s_waitcnt lgkmcnt(0)
    s_barrier
    s_cmp_lg_u32 s16, 0
    s_cbranch_scc1 AL_SKIP""")
    if prof: g(f"{TM} s[54:55]")
    for w in range(4):
        g(f"ds_read_b128 {v(36+4*w,4)}, v{vPR1} offset:{3072*w}")
        if w&1: g(f"ds_read2st64_b32 {v(51+w,2)}, v{vPR2} offset0:{12*(w-1)} offset1:{12*w}")
    g(f"""
    s_waitcnt lgkmcnt(4)
    v_pk_add_f32 v[36:37], v[36:37], v[40:41]
    v_pk_add_f32 v[38:39], v[38:39], v[42:43]
    s_waitcnt lgkmcnt(0)
    v_pk_add_f32 v[44:45], v[44:45], v[48:49]
    v_pk_add_f32 v[46:47], v[46:47], v[50:51]
    v_pk_add_f32 v[52:53], v[52:53], v[54:55]
    v_pk_add_f32 v[36:37], v[36:37], v[44:45]
    v_pk_add_f32 v[38:39], v[38:39], v[46:47]
    v_add_f32 v40, v52, v53
    v_max3_f32 v41, v36, v37, v38
    v_max3_f32 v41, v41, v39, v40
    v_max_f32_dpp v41, v41, v41 quad_perm:[1,0,3,2] row_mask:0xf bank_mask:0xf
    v_mov_b32 v42, v41
    v_permlane16_swap_b32 v41, v42
    v_max_f32 v41, v41, v42
    v_mov_b32 v42, v41
    v_permlane32_swap_b32 v41, v42
    v_max_f32 v41, v41, v42
    v_mul_f32 v41, s43, v41
    v_fma_f32 v36, v36, s43, -v41
    v_fma_f32 v37, v37, s43, -v41
    v_exp_f32 v36, v36
    v_fma_f32 v38, v38, s43, -v41
    v_exp_f32 v37, v37
    v_fma_f32 v39, v39, s43, -v41
    v_exp_f32 v38, v38
    v_fma_f32 v40, v40, s43, -v41
    v_exp_f32 v39, v39
    v_add_f32 v41, v36, v37
    v_exp_f32 v40, v40
    v_add_f32 v41, v41, v38
    v_add_f32 v42, v39, v40
    v_add_f32 v41, v41, v42
    v_add_f32_dpp v41, v41, v41 quad_perm:[1,0,3,2] row_mask:0xf bank_mask:0xf
    v_mov_b32 v42, v41
    v_permlane16_swap_b32 v41, v42
    v_add_f32 v41, v41, v42
    v_mov_b32 v42, v41
    v_permlane32_swap_b32 v41, v42
    v_add_f32 v41, v41, v42
    v_rcp_f32 v41, v41
    v_pk_mul_f32 v[36:37], v[36:37], v[40:41] op_sel:[0,1] op_sel_hi:[1,1]
    v_pk_mul_f32 v[38:39], v[38:39], v[40:41] op_sel:[0,1] op_sel_hi:[1,1]
    v_mul_f32 v40, v40, v41
    v_cvt_pk_bf16_f32 v42, |v36|, |v37|
    v_cvt_pk_bf16_f32 v43, |v38|, |v39|
    v_cvt_pk_bf16_f32 v44, |v40|, |v40|
    {'' if TRIM else 'v_and_b32 v42, s44, v42'+chr(10)+'v_and_b32 v43, s44, v43'+chr(10)+'v_and_b32 v44, s44, v44'}
    s_cmp_eq_u32 s40, 0
    s_cbranch_scc1 AL_SLOW
    global_store_dwordx2 v{vS1}, v[42:43], s[32:33]
    global_store_short v{vS2}, v44, s[32:33]
    {PD_A}
    s_branch AL_SKIP
    AL_SLOW:
    global_store_dwordx2 v{vS1}, v[42:43], s[32:33] sc1
    global_store_short v{vS2}, v44, s[32:33] sc1
    AL_SKIP:
    """)
    if prof:
        g(f"""{TM} s[56:57]
        s_cmp_lg_u32 s16, 0
        s_cbranch_scc1 AL_NP
        s_waitcnt lgkmcnt(0)
        v_mov_b32 v36, s50
        v_mov_b32 v37, s52
        v_mov_b32 v38, s54
        v_mov_b32 v39, s56
        s_mul_i32 s20, s17, 1024
        s_lshl_b32 s21, s45, 4
        s_add_u32 s20, s20, s21
        s_add_u32 s20, s20, {WSEND}
        v_mov_b32 v40, s20
        global_store_dwordx4 v40, v[36:39], s[4:5]
        AL_NP:""")
    for t in xdma(): g(t)
    for i in list(range(36,56,2))+list(range(98,106,2)): g(f"v_mov_b64 {v(i,2)}, 0")
    g(f"v_xor_b32 v{vXR}, 0x18000, v{vXR}\nv_xor_b32 v{vXR2}, 0x18000, v{vXR2}")
    if APD: g(f"""s_cmp_eq_u32 s59, 0
    s_cbranch_scc1 AL_F1
    v_lshrrev_b32 v35, 4, v108
    v_and_b32 v35, 7, v35
    v_lshlrev_b32 v35, 8, v35
    v_add_u32 v35, {F_VX}, v35
    global_load_dword v34, v35, s[4:5] sc1
    s_waitcnt vmcnt(0)
    v_cmp_gt_u32 vcc, {NVX}, v34
    s_mov_b32 s59, vcc_lo
    AL_F1:
    s_cmp_ge_u32 s45, {62-APD}
    s_cselect_b32 s20, 0, 458752
    s_add_u32 s48, s48, s20
    s_addc_u32 s49, s49, 0
    s_cmp_eq_u32 s59, 0
    s_cselect_b32 s38, s48, s4
    s_cselect_b32 s39, s49, s5""")
    if SLA: g(f"s_cmp_eq_u32 s16, 0\ns_cbranch_scc1 AL_S0\ns_sleep {SLA[1]}\nAL_S0:\ns_sleep {SLA[0]}")
    g(f"""
    s_add_u32 s30, s30, 7168
    s_addc_u32 s31, s31, 0
    s_add_u32 s32, s32, 10240
    s_addc_u32 s33, s33, 0
    s_add_u32 s45, s45, 1
    s_cmp_lt_u32 s45, 63
    s_cbranch_scc1 AL_LOOP
    """)
    if prof: g(f"""s_memrealtime s[50:51]
    s_mov_b32 s41, 0
    s_waitcnt lgkmcnt(0)
    AL_CAL:
    s_memrealtime s[52:53]
    s_memtime s[54:55]
    s_add_u32 s41, s41, 1
    s_cmp_gt_u32 s41, 1000
    s_cbranch_scc1 AL_CAL2
    s_waitcnt lgkmcnt(0)
    s_cmp_eq_u32 s50, s52
    s_cbranch_scc1 AL_CAL
    AL_CAL2:
    s_mul_i32 s20, s17, 1024
    s_add_u32 s20, s20, {WSEND+0+63*16}
    v_mov_b32 v12, s20
    v_mov_b32 v8, s52
    v_mov_b32 v9, s54
    s_cmp_lg_u32 s16, 0
    s_cbranch_scc1 AL_EXIT
    global_store_dwordx2 v12, v[8:9], s[4:5]""")
    g(f"""
    AL_EXIT:
    s_waitcnt vmcnt(0)
    s_endpgm
    """)

def beta(g, prof=False, flags=False, gamma=False):
    T='GA' if gamma else 'BE'
    MEM=8; WT=52; Ub=68; US=84; PO=92; D=104; PL=40; VO=8
    vP0,vP1,vL=0,1,2; vWL,vVR,vD0,vD1,vU=3,4,5,6,7; IDX=113
    vRW,vRR,vM1,vM2,vPx,vPm=120,121,122,123,124,125
    acc=(lambda hh,ct: 36+8*(hh&1)+4*ct) if gamma else (lambda hh,ct: (36,44,84,104)[hh]+4*ct)
    g(f"""
    {'s_cmp_ge_u32 s17, 14' if gamma else 's_sub_u32 s17, s17, 16'}
    {'s_cselect_b32 s45, 1, 0' if gamma else ''}
    {'s_cselect_b32 s20, 14, 0' if gamma else ''}
    {'s_sub_u32 s17, s17, s20' if gamma else ''}
    s_mul_i32 s20, s17, 458752
    s_mul_i32 s21, s16, 114688
    s_add_u32 s20, s20, s21
    s_add_u32 s20, s20, {WB}
    s_add_u32 s36, s4, s20
    s_addc_u32 s37, s5, 0
    v_and_b32 v118, 63, v0
    v_lshlrev_b32 v118, 4, v118
    s_lshl_b32 s42, s16, 14
    s_add_u32 s42, s42, 0x18000
    """)
    for tl in range(8):
        g(f"v_add_u32 v119, {tl*14336}, v118")
        for kk in range(6):
            if kk and kk%2==0: g("v_add_u32 v119, 4096, v119")
            for h2 in range(2): g(f"global_load_dwordx4 {sub(wreg_b(tl*6+kk),h2)}, v119, s[36:37] offset:{(kk%2)*2048+h2*1024}")
        g(f"v_add_u32 v119, 4096, v119\ns_add_u32 m0, s42, {tl*2048}\ns_nop 0")
        for h2 in range(2): g(f"global_load_lds_dwordx4 v119, s[36:37] offset:{h2*1024}")
    if not gamma: team_sync(g,"BE")
    common_setup(g)
    g(f"""
    v_add_u32 v{vWL}, s42, v2
    s_lshl_b32 s42, s16, 13
    s_add_u32 s42, s42, 0x8000
    v_add_u32 v{vVR}, s42, v2
    s_lshl_b32 s20, s16, 13
    v_add_u32 v{vD0}, s20, v2
    v_add_u32 v{vD1}, 4096, v{vD0}
    s_lshl_b32 s20, s17, 15
    s_add_u32 s20, s20, {VX}
    s_add_u32 s34, s4, s20
    s_addc_u32 s35, s5, 0
    v_and_b32 v98, 1, v119
    v_lshrrev_b32 v99, 1, v119
    v_lshlrev_b32 v100, 5, v98
    v_lshl_add_u32 v100, v99, 4, v100
    v_add_u32 v100, v100, v117
    v_lshlrev_b32 v100, 4, v100
    s_lshl_b32 s20, s16, 11
    v_add_u32 v{vU}, s20, v100
    s_lshl_b32 s20, s17, 13
    s_add_u32 s20, s20, {UB}
    s_add_u32 s46, s4, s20
    s_addc_u32 s47, s5, 0
    s_lshl_b32 s20, s16, 10
    s_add_u32 s20, s20, 0x2000
    v_lshlrev_b32 v100, 2, v118
    v_add_u32 v{vRW}, s20, v100
    s_lshl_b32 s20, s16, 8
    s_add_u32 s20, s20, 0x2000
    v_and_b32 v100, 31, v118
    v_lshlrev_b32 v101, 3, v100
    v_add_u32 v{vRR}, s20, v101
    v_bfe_u32 v101, v118, 4, 1
    v_bfe_u32 v102, v118, 3, 1
    v_lshlrev_b32 v102, 2, v102
    v_add_u32 v102, s16, v102
    v_lshlrev_b32 v102, 4, v102
    v_lshl_add_u32 v102, v101, 8, v102
    s_lshl_b32 s20, s17, 9
    v_add_u32 v102, s20, v102
    v_bfe_u32 v103, v118, 2, 1
    v_lshl_add_u32 v104, v103, 7, v102
    v_and_b32 v105, 3, v118
    v_lshl_add_u32 v{vM1}, v105, 2, v104
    v_add_u32 v{vM1}, 7168, v{vM1}
    v_add_u32 v{vM2}, 7168, v{vM1}
    v_mov_b32 v126, -1
    s_add_u32 s48, s4, {MEM2}
    s_addc_u32 s49, s5, 0
    s_lshl_b32 s20, s16, 11
    v_add_u32 v{vPx}, s20, v2
    v_lshlrev_b32 v102, 8, v99
    v_lshl_add_u32 v102, v117, 4, v102
    s_lshl_b32 s20, s16, 9
    s_add_u32 s20, s20, 8192
    v_add_u32 v{vPm}, s20, v102
    s_mov_b32 s44, 0x80008000
    {'' if gamma else 's_mov_b32 s45, 0'}
    """)
    def vdma():
        L=[]
        for hf in range(2):
            for i in range(4):
                p=f"s_add_u32 m0, s42, {4096*hf}\ns_nop 0\n" if i==0 else ""
                L.append(p+f"global_load_lds_dwordx4 v{vD0+hf}, s[34:35] offset:{1024*i}")
        L.append("s_add_u32 s34, s34, 458752\ns_addc_u32 s35, s35, 0\ns_xor_b32 s42, s42, 0x18000")
        return L
    if gamma:
        g(f"""s_lshl_b32 s20, s17, 4
        s_lshl_b32 s21, s16, 2
        s_add_u32 s20, s20, s21
        s_lshl_b32 s21, s45, 8
        s_add_u32 s20, s20, s21
        s_add_u32 s20, s20, {F_STEP-512}
        v_mov_b32 v114, s20
        s_mul_i32 s20, s45, 7168
        s_add_u32 s30, s48, s20
        s_addc_u32 s31, s49, 0
        s_mul_i32 s20, s45, 114688
        s_add_u32 s46, s46, s20
        s_addc_u32 s47, s47, 0""")
    if flags and not gamma:
        g(f"""v_min_u32 v112, 7, v118
        v_lshlrev_b32 v112, 8, v112
        v_add_u32 v112, {F_VX}, v112
        s_mov_b32 s41, 0
        BE_V0:
        global_load_dword v115, v112, s[4:5] sc1
        s_add_u32 s41, s41, 1
        s_cmp_gt_u32 s41, {SPIN}
        s_cbranch_scc1 BE_EXIT
        s_waitcnt vmcnt(0)
        v_cmp_gt_u32 vcc, {NVX}, v115
        s_mov_b32 s59, vcc_lo
        s_bitcmp1_b32 s59, 0
        s_cbranch_scc1 BE_V0
        """)
    VE=int(os.environ.get('VE','0'))
    def vd2(tag, inc):
        g(f"s_cmp_lt_u32 s16, 2\ns_cbranch_scc1 {tag}")
        for q in range(4):
            g(f"s_add_u32 s36, s34, {4096*q}\ns_addc_u32 s37, s35, 0\ns_add_u32 m0, s42, {4096*q}\ns_nop 0")
            for i in range(4): g(f"global_load_lds_dwordx4 v{vD0}, s[36:37] offset:{1024*i}")
        g(f"s_add_u32 s34, s34, {inc}\ns_addc_u32 s35, s35, 0\ns_xor_b32 s42, s42, 0x18000\n{tag}:")
    if not gamma and VE==2:
        g(f"""s_and_b32 s20, s16, 1
        s_lshl_b32 s21, s20, 14
        v_add_u32 v{vD0}, s21, v2
        s_add_u32 s42, s21, 0x8000
        s_mul_i32 s20, s20, 3072
        v_add_u32 v0, s20, v2""")
        vd2("BE_D0",458752); vd2("BE_D1",458752); g("s_waitcnt vmcnt(0)")
    elif not gamma:
        for t in vdma()*(1+VE): g(t)
    for i in list(range(36,52))+([] if gamma else list(range(84,92))+list(range(104,112))): g(f"v_mov_b32 v{i}, 0")
    if PD and not gamma: g(f"s_cmp_eq_u32 s40, 0\ns_cbranch_scc1 BE_LOOP\ns_mov_b32 exec_hi, 0\nglobal_store_dword v{vM1}, v126, s[30:31]\ns_mov_b32 exec_hi, -1")
    g(f"{T}_LOOP:")
    PLr=104
    if gamma:
        poll_mem(g,T,PLr,vP0,vP1)
        g("s_cmp_eq_u32 s45, 63\ns_cbranch_scc1 GA_NF" if BT else "")
        g("s_cmp_lt_u32 s45, 2\ns_cbranch_scc1 GA_NF\nglobal_store_dword v114, v113, s[4:5] sc1\nGA_NF:\nv_add_u32 v114, 512, v114")
    elif VE==2:
        g(f"s_cmp_ge_u32 s16, 2\ns_cbranch_scc1 BE_PB\ns_mov_b32 s41, 0\nBE_PM:")
        for i in range(4): g(f"global_load_dwordx4 {v(8+4*i,4)}, v0, s[30:31] offset:{1024*i} sc1")
        g(f"s_add_u32 s41, s41, 1\ns_cmp_gt_u32 s41, {SPIN}\ns_cbranch_scc1 BE_EXIT\ns_waitcnt vmcnt(0)\nv_max_u32 v116, v8, v9")
        for i in range(7): g(f"v_max3_u32 v116, v116, v{10+2*i}, v{11+2*i}")
        g("v_cmp_eq_u32 vcc, -1, v116\ns_cbranch_vccnz BE_PM")
        for i in range(4): g(f"ds_write_b128 v0, {v(8+4*i,4)} offset:{1024*i}")
        g("s_waitcnt lgkmcnt(0)\nBE_PB:\ns_barrier")
    else:
        ED=int(os.environ.get('ED','0'))
        g("s_cmp_ge_u32 s45, 61\ns_cselect_b32 s58, 0, 458752")
        poll_mem(g,T,PO,vP0,vP1,None,[t.replace("458752","s58") for t in vdma()] if ED else [])
    if prof: g(f"{TM} s[52:53]")
    for kk in range(7): g(f"ds_read_b128 {v(MEM+4*kk,4)}, v{vL} offset:{1024*kk}")
    if flags and not gamma: g(f"s_cmp_eq_u32 s59, 0\ns_cbranch_scc1 BE_V1\nglobal_load_dword v115, v112, s[4:5] sc1\nBE_V1:")
    def wl(hh): return [f"ds_read_b128 {v(WT+8*ct+4*h2,4)}, v{vWL} offset:{(hh*2+ct)*2048+h2*1024}" for ct in range(2) for h2 in range(2)]
    def sm(hh,ct,kk):
        w=wreg_b((hh*2+ct)*6+kk) if kk<6 else v(WT+8*ct,8)
        return f"v_smfmac_f32_16x16x64_bf16 {v(acc(hh,ct),4)}, {v(MEM+4*kk,4)}, {w}, v{IDX}"
    def post(hh):
        L=[]
        if not gamma:
          for ct in range(2):
            A=acc(hh,ct); d=Ub+8*ct+2*hh
            L+=[f"v_cvt_pk_bf16_f32 v{d}, v{A}, v{A+1}", f"v_cvt_pk_bf16_f32 v{d+1}, v{A+2}, v{A+3}"]
        A=acc(hh,0);B=acc(hh,1)
        if not gamma: return L+[f"v_mov_b32 v{A+i}, 0" for i in range(8)]
        L+=[f"v_permlane32_swap_b32 v{A+i}, v{B+i}" for i in range(4)]
        L+=[f"v_pk_add_f32 {v(A,2)}, {v(A,2)}, {v(B,2)}", f"v_pk_add_f32 {v(A+2,2)}, {v(A+2,2)}, {v(B+2,2)}"]
        d=US+4*(hh>>1)+2*(hh&1)
        L+=[f"v_cvt_pk_bf16_f32 v{d}, v{A}, v{A+1}", f"v_cvt_pk_bf16_f32 v{d+1}, v{A+2}, v{A+3}"]
        if hh&1: L.append(f"global_store_dwordx4 v{vU}, {v(US+4*(hh>>1),4)}, s[46:47] offset:{1024*(hh>>1)} sc1")
        L+=[f"v_mov_b32 v{A+i}, 0" for i in range(8)]
        return L
    vd=vdma()
    cvs=lambda hh: [f"v_cvt_pk_bf16_f32 v{Ub+8*ct+2*hh+i}, v{acc(hh,ct)+2*i}, v{acc(hh,ct)+2*i+1}" for ct in range(2) for i in range(2)]
    vo=[f"ds_read_b128 {v(VO+16*p+8*ct+4*j,4)}, v{vVR} offset:{((2*p+j)*2+ct)*1024}" for p in range(2) for ct in range(2) for j in range(2)]
    if not gamma:
        assert not VE and not PIPE
        g("s_cmp_ge_u32 s45, 61\ns_cselect_b32 s58, 0, 458752\ns_mov_b32 m0, s42")
        M=[sm(hh,ct,kk) for hh in range(4) for kk in range(7) for ct in range(2)]
        side={-1:wl(0)+["s_waitcnt lgkmcnt(10)"]}
        ld=[f"global_load_lds_dwordx4 v{vD0+i//4}, s[34:35] offset:{1024*(i%4)}" for i in range(8)]
        for kk in range(1,6): side[2*kk-1]=[f"s_waitcnt lgkmcnt({10-kk})"]
        for i in range(4): side[2*i]=[ld[i]]
        side[8]=["s_add_u32 m0, s42, 4096"]; side[10]=[ld[4]]; side[12]=[ld[5]]; side[13]=[ld[6]]
        for hh in range(4):
            side[14*hh+11]=["s_waitcnt lgkmcnt(0)"]
            if hh:
                for i,t in enumerate(wl(hh)+cvs(hh-1)): side[14*hh+i]=[t]
        side[22]=[ld[7]]; side[23]=["s_add_u32 s34, s34, s58"]; side[24]=["s_addc_u32 s35, s35, 0"]; side[26]=["s_xor_b32 s42, s42, 0x18000"]
        side[54]=[vo[0]]
        if ED:
            for i in (0,2,4,6,8,10,12,13,22,23,24,26): del side[i]
        weave(g,M,side)
    for hh in range(4 if gamma else 0):
        M=[];side={}
        for kk in range(7):
            if hh==0: side.setdefault(len(M)-1,[]).append(f"s_waitcnt lgkmcnt({6-kk+4 if kk<6 else 0})")
            elif kk==6: side.setdefault(len(M)-1,[]).append("s_waitcnt lgkmcnt(0)")
            M+=[sm(hh,0,kk),sm(hh,1,kk)]
        side.setdefault(-1,[])[:0]=wl(hh)
        if hh==0:
          if not gamma and not VE:
            g("s_cmp_ge_u32 s45, 61\ns_cselect_b32 s58, 0, 458752")
            vd[-1]=vd[-1].replace("458752","s58")
            for i,t in enumerate(vd):
                if 'load' in t and os.environ.get('NOVD'): continue
                side.setdefault(2+i,[]).append(t)
        else:
            P=post(hh-1)
            for i,t in enumerate(P): side.setdefault(4+i//3,[]).append(t)
        weave(g,M,side)
    if gamma:
        for t in post(3): g(t)
    if gamma:
        g(f"""
        s_add_u32 s46, s46, {2*114688}
        s_addc_u32 s47, s47, 0
        s_add_u32 s30, s30, {2*7168}
        s_addc_u32 s31, s31, 0
        s_add_u32 s45, s45, 2
        s_barrier
        s_cmp_lt_u32 s45, {63 if BT else 64}
        s_cbranch_scc1 GA_LOOP
        s_waitcnt vmcnt(0)
        global_store_dword v114, v113, s[4:5] sc1
        GA_EXIT:
        s_waitcnt vmcnt(0)
        s_endpgm
        """)
        return
    if prof: g(f"{TM} s[54:55]")
    if SLB: g(f"s_sleep {SLB}")
    iss=lambda X: f"""global_load_dwordx4 {v(X,4)}, v{vPx}, s[32:33] sc1
    global_load_dwordx4 {v(X+4,4)}, v{vPx}, s[32:33] offset:1024 sc1
    global_load_dwordx4 {v(X+8,4)}, v{vPm}, s[32:33] sc1"""
    chk=lambda X: f"""v_or3_b32 v116, v{X}, v{X+1}, v{X+2}
    v_or3_b32 v117, v{X+3}, v{X+4}, v{X+5}
    v_or3_b32 v116, v116, v{X+6}, v{X+7}
    v_or3_b32 v117, v117, v{X+8}, v{X+9}
    v_or3_b32 v116, v116, v{X+10}, v{X+11}
    v_or_b32 v116, v116, v117
    v_and_b32 v116, s44, v116
    v_cmp_ne_u32 vcc, 0, v116"""
    def fin(X):
        if prof: g(f"{TM} s[56:57]")
        for p in range(2):
            for ct in range(2): g(f"v_smfmac_f32_16x16x64_bf16 {v(D+4*ct,4)}, {v(X+4*p,4)}, {v(VO+16*p+8*ct,8)}, v{IDX}")
        for ct in range(2): g(f"v_smfmac_f32_16x16x64_bf16 {v(D+4*ct,4)}, {v(X+8,4)}, {v(Ub+8*ct,8)}, v{IDX}")
    if PIPE:
        g(f"""
        s_mov_b32 s41, 0
        {iss(PO)}
        s_sleep {PSL}
        BE_PP:
        {iss(WT)}
        s_add_u32 s41, s41, 1
        s_cmp_gt_u32 s41, {SPIN}
        s_cbranch_scc1 BE_EXIT
        s_waitcnt vmcnt(3) lgkmcnt(0)
        {chk(PO)}
        s_cbranch_vccz BE_QA
        {iss(PO)}
        s_waitcnt vmcnt(3)
        {chk(WT)}
        s_cbranch_vccnz BE_PP""")
        fin(WT)
        g("s_branch BE_QJ\nBE_QA:")
        fin(PO)
        g("BE_QJ:")
    else:
        g(f"""
        s_mov_b32 s41, 0
        {iss(PO)}
        {chr(10).join(vo[1:]+cvs(3)+[f"v_mov_b64 {v(D+2*i,2)}, 0" for i in range(4)])}
        v_xor_b32 v{vVR}, 0x18000, v{vVR}
        s_branch BE_PQ
        BE_PP:
        {iss(PO)}
        BE_PQ:
        s_add_u32 s41, s41, 1
        s_cmp_gt_u32 s41, {SPIN}
        s_cbranch_scc1 BE_EXIT
        s_waitcnt vmcnt(0) lgkmcnt(0)
        {chk(PO)}
        s_cbranch_vccnz BE_PP""")
        fin(PO)
    for i in range(4): g(f"v_permlane32_swap_b32 v{D+i}, v{D+4+i}")
    g(f"""
    v_pk_add_f32 {v(D,2)}, {v(D,2)}, {v(D+4,2)}
    v_pk_add_f32 {v(D+2,2)}, {v(D+2,2)}, {v(D+6,2)}
    ds_write2st64_b32 v{vRW}, v{D}, v{D+1} offset0:0 offset1:1
    ds_write2st64_b32 v{vRW}, v{D+2}, v{D+3} offset0:2 offset1:3
    s_waitcnt lgkmcnt(0)
    s_barrier
    ds_read2st64_b64 v[8:11], v{vRR} offset0:0 offset1:2
    ds_read2st64_b64 v[12:15], v{vRR} offset0:4 offset1:6
    s_mov_b32 exec_hi, 0
    s_waitcnt lgkmcnt(1)
    v_pk_add_f32 v[8:9], v[8:9], v[10:11]
    s_waitcnt lgkmcnt(0)
    v_pk_add_f32 v[12:13], v[12:13], v[14:15]
    v_pk_add_f32 v[8:9], v[8:9], v[12:13]
    v_cvt_pk_bf16_f32 v8, v8, v9
    v_min_u32 v8, -2, v8
    s_cmp_eq_u32 s40, 0
    s_cbranch_scc1 BE_SLOW
    global_store_dword v{vM1}, v8, s[30:31]
    {f"global_store_dword v{vM2}, v126, s[30:31]" if PD else ""}
    s_branch BE_PUB
    BE_SLOW:
    global_store_dword v{vM1}, v8, s[30:31] sc1
    BE_PUB:
    {f"{TM} s[50:51]" if prof else ""}
    s_mov_b32 exec_hi, -1
    {chr(10).join(f"v_mov_b64 {v(i,2)}, 0" for i in list(range(36,52,2))+list(range(84,92,2))+list(range(104,112,2)))}
    """)
    if prof:
        g(f"""s_cmp_lg_u32 s16, 0
        s_cbranch_scc1 BE_NP
        s_waitcnt lgkmcnt(0)
        v_mov_b32 v8, s50
        v_mov_b32 v9, s52
        v_mov_b32 v10, s54
        v_mov_b32 v11, s56
        s_mul_i32 s20, s17, 1024
        s_lshl_b32 s21, s45, 4
        s_add_u32 s20, s20, s21
        s_add_u32 s20, s20, {WSEND+16384}
        v_mov_b32 v12, s20
        global_store_dwordx4 v12, v[8:11], s[4:5]
        BE_NP:""")
    if flags:
        g(f"""s_cmp_eq_u32 s59, 0
        s_cbranch_scc1 BE_V3
        s_add_u32 s20, s45, 2
        s_lshr_b32 s20, s20, 3
        s_mov_b32 s41, 0
        BE_V2:
        v_cmp_gt_u32 vcc, {NVX}, v115
        s_mov_b32 s59, vcc_lo
        s_bitcmp0_b32 s59, s20
        s_cbranch_scc1 BE_V3
        global_load_dword v115, v112, s[4:5] sc1
        s_add_u32 s41, s41, 1
        s_cmp_gt_u32 s41, {SPIN}
        s_cbranch_scc1 BE_EXIT
        s_waitcnt vmcnt(0)
        s_branch BE_V2
        BE_V3:""")
    if VE: g("s_cmp_ge_u32 s45, 60\ns_cselect_b32 s58, 0, 458752")
    if VE==2: vd2("BE_D2","s58")
    elif VE:
        vd[-1]=vd[-1].replace("458752","s58")
        for t in vd: g(t)
    g(f"""
    s_add_u32 s30, s30, 7168
    s_addc_u32 s31, s31, 0
    s_add_u32 s32, s32, 10240
    s_addc_u32 s33, s33, 0
    s_add_u32 s45, s45, 1
    {f"s_sleep {SLC}" if SLC else ""}
    s_cmp_lt_u32 s45, 63
    s_cbranch_scc1 BE_LOOP
    """)
    if prof: g(f"""s_memrealtime s[50:51]
    s_mov_b32 s41, 0
    s_waitcnt lgkmcnt(0)
    BE_CAL:
    s_memrealtime s[52:53]
    s_memtime s[54:55]
    s_add_u32 s41, s41, 1
    s_cmp_gt_u32 s41, 1000
    s_cbranch_scc1 BE_CAL2
    s_waitcnt lgkmcnt(0)
    s_cmp_eq_u32 s50, s52
    s_cbranch_scc1 BE_CAL
    BE_CAL2:
    s_mul_i32 s20, s17, 1024
    s_add_u32 s20, s20, {WSEND+16384+63*16}
    v_mov_b32 v12, s20
    v_mov_b32 v8, s52
    v_mov_b32 v9, s54
    s_cmp_lg_u32 s16, 0
    s_cbranch_scc1 BE_EXIT
    global_store_dwordx2 v12, v[8:9], s[4:5]""")
    g(f"""
    {'''s_lshl_b32 s20, s17, 4
    s_lshl_b32 s21, s16, 2
    s_add_u32 s20, s20, s21
    s_add_u32 s20, s20, %d
    v_mov_b32 v114, s20
    s_add_u32 s46, s46, %d
    s_addc_u32 s47, s47, 0
    s_branch GA_LOOP''' % (F_STEP+63*256-512, 63*114688) if BT else ''}
    BE_EXIT:
    s_waitcnt vmcnt(0)
    s_endpgm
    """)

def eta(g):
    team_sync(g,"ET")
    NI=65536//(64*PFS)
    g(f"""
    s_sub_u32 s17, s17, 30
    s_lshl_b32 s17, s17, 2
    s_add_u32 s17, s17, s16
    v_and_b32 v2, 63, v0
    s_cmp_lg_u32 s17, 0
    s_cbranch_scc1 ET_PF
    v_lshlrev_b32 v3, 4, v2
    v_add_u32 v4, 4096, v3
    s_add_u32 s30, s4, {MEMB+7168}
    s_addc_u32 s31, s5, 0
    s_add_u32 s32, s4, {MEM2+7168}
    s_addc_u32 s33, s5, 0
    s_mov_b32 s45, 1
    ET_CL:
    s_mov_b32 s41, 0
    ET_CP:""")
    for kk in range(7): g(f"global_load_dwordx4 {v(8+4*kk,4)}, v{3+kk//4}, s[30:31] offset:{1024*(kk%4)} sc1")
    g(f"""s_add_u32 s41, s41, 1
    s_cmp_gt_u32 s41, {SPIN}
    s_cbranch_scc1 ET_EXIT
    s_waitcnt vmcnt(0)
    v_max_u32 v5, v8, v9""")
    for i in range(13): g(f"v_max3_u32 v5, v5, v{10+2*i}, v{11+2*i}")
    g("v_cmp_eq_u32 vcc, -1, v5\ns_cbranch_vccz ET_CS\ns_sleep 1\ns_branch ET_CP\nET_CS:")
    for kk in range(7): g(f"global_store_dwordx4 v{3+kk//4}, {v(8+4*kk,4)}, s[32:33] offset:{1024*(kk%4)} sc1")
    g(f"""s_add_u32 s30, s30, 7168
    s_addc_u32 s31, s31, 0
    s_add_u32 s32, s32, 7168
    s_addc_u32 s33, s33, 0
    s_add_u32 s45, s45, 1
    s_cmp_lt_u32 s45, 63
    s_cbranch_scc0 ET_C2
    s_sleep {ESL}
    ET_C2:
    s_cmp_lt_u32 s45, 64
    s_cbranch_scc1 ET_CL
    s_branch ET_EXIT
    ET_PF:
    s_sub_u32 s17, s17, 1
    s_lshl_b32 s20, s17, 16
    s_add_u32 s20, s20, {VX}
    s_add_u32 s30, s4, s20
    s_addc_u32 s31, s5, 0
    s_lshl_b32 s20, s17, 12
    s_add_u32 s20, s20, {XA}
    s_add_u32 s32, s4, s20
    s_addc_u32 s33, s5, 0
    v_mul_u32_u24 v3, {PFS}, v2
    v_lshlrev_b32 v4, 6, v2
    s_mov_b32 s45, 0
    ET_PL:
    s_and_b32 s20, s45, 7
    s_cmp_lg_u32 s20, 0
    s_cbranch_scc1 ET_P1
    s_lshl_b32 s24, s45, 5
    s_add_u32 s24, s24, {F_VX}""")
    wait_flag(g,24,NVX,"EV","ET_EXIT",sleep=4)
    g(f"""ET_P1:
    s_cmp_lt_u32 s45, {PFD+1}
    s_cbranch_scc1 ET_P2
    s_sub_u32 s24, s45, {PFD}
    s_mul_i32 s24, s24, 7168
    s_add_u32 s24, s24, {MEMB}""")
    wait_flag(g,24,None,"EM","ET_EXIT",sleep=8)
    g("ET_P2:\nglobal_load_dword v31, v4, s[32:33]\nv_mov_b32 v5, v3")
    for i in range(0 if not os.environ.get('PF') else NI): g(f"global_load_dword v{32+i}, v5, s[30:31]\nv_add_u32 v5, {64*PFS}, v5")
    g(f"""s_add_u32 s30, s30, 458752
    s_addc_u32 s31, s31, 0
    s_add_u32 s32, s32, 28672
    s_addc_u32 s33, s33, 0
    s_add_u32 s45, s45, 1
    s_cmp_lt_u32 s45, 63
    s_cbranch_scc1 ET_PL
    ET_EXIT:
    s_waitcnt vmcnt(0)
    s_endpgm""")

def claim(g, addr_off, dst, tag):
    g(f"""
    s_barrier
    s_cmp_lg_u32 s16, 0
    s_cbranch_scc1 {tag}_C1
    v_mov_b32 v1, {addr_off}
    v_mov_b32 v2, 1
    s_mov_b64 exec, 1
    global_atomic_add v3, v1, v2, s[4:5] sc0 sc1
    v_mov_b32 v1, 0x27F00
    s_waitcnt vmcnt(0)
    ds_write_b32 v1, v3
    s_mov_b64 exec, -1
    s_waitcnt lgkmcnt(0)
    {tag}_C1:
    s_barrier
    v_mov_b32 v1, 0x27F00
    ds_read_b32 v2, v1
    s_waitcnt lgkmcnt(0)
    v_readfirstlane_b32 s{dst}, v2
    """)

def team_entry(g, prof=False, **kw):
    g(f"""
    s_add_u32 s20, s19, 1
    v_mov_b32 v2, s20
    s_lshl_b32 s20, s17, 2
    s_add_u32 s20, s20, {F_XCC}
    v_mov_b32 v1, s20
    global_store_dword v1, v2, s[4:5] sc1
    s_cmp_ge_u32 s17, 30
    s_cbranch_scc1 ETA
    s_cmp_ge_u32 s17, 16
    s_cbranch_scc1 BETA
    """)
    alpha(g,prof)
    g("BETA:")
    beta(g,prof,**kw)
    g("ETA:")
    eta(g)

def team_dbg(prof=True, xsel=0, spread=False):
    g=G()
    g(f"""s_cmp_ge_u32 s2, 256
    s_cbranch_scc1 team_END
    s_load_dwordx2 s[4:5], s[0:1], {K_WS}
    s_load_dwordx2 s[8:9], s[0:1], {K_BX}
    s_getreg_b32 s19, hwreg(HW_REG_XCC_ID)
    s_and_b32 s19, s19, 15
    v_lshrrev_b32 v1, 6, v0
    s_nop 0
    v_readfirstlane_b32 s16, v1
    s_waitcnt lgkmcnt(0)""")
    if not spread: g(f"s_cmp_lg_u32 s19, {xsel}\ns_cbranch_scc1 team_END")
    claim(g, F_ROLE, 17, "TD")
    g("s_cmp_ge_u32 s17, 30\ns_cbranch_scc1 team_END")
    team_entry(g,prof)
    g("team_END:")
    return ("team_kernel", g.text(), 512, 256, 256, 256, 160*1024)
```
